```python
import torch

def _softmax(x, axis=-1):
    return torch.softmax(x, dim=axis)
def _gelu(x):
    return torch.nn.functional.gelu(x, approximate="tanh")
def _silu(x):
    return torch.nn.functional.silu(x)
def _sigmoid(x):
    return torch.sigmoid(x)
def _layernorm(x, axis=-1, eps=1e-5):
    m = x.mean(dim=axis, keepdim=True)
    v = x.var(dim=axis, keepdim=True, unbiased=False)
    return (x - m) / torch.sqrt(v + eps)
def _scatter_add(tgt, idx, src, axis=0):
    return tgt.clone().index_add_(axis, idx, src)
def _segment_sum(src, seg, n):
    out = torch.zeros((n,) + src.shape[1:], dtype=src.dtype)
    return out.index_add_(0, seg, src)
def _pad(x, pw):
    flat = tuple(v for pair in reversed(pw) for v in pair)
    return torch.nn.functional.pad(x, flat)

kernel_name = 'parallel_sum__sliding_local_dilated__moe_arch_mod__prompt'

def setup_inputs():

    _w = (lambda a: (lambda t: t.to(torch.bfloat16) if t.is_floating_point() else t)(torch.as_tensor(a)))
    def _A_setup():
        B, S, D = 1, 2048, 640
        return {
            "x": _w((lambda *s: torch.randn(*s, dtype=torch.bfloat16) * 0.05)(B, S, D)),
            "wqkv": _w((lambda *s: torch.randn(*s, dtype=torch.bfloat16) * 0.05)(D, 3 * D)),
            "wo": _w((lambda *s: torch.randn(*s, dtype=torch.bfloat16) * 0.05)(D, D)),
        }
    _A_in = _A_setup()

    def _B_setup():
        B, S, D, F, C = 1, 2048, 640, 1728, 2
        return {
            "x": _w((lambda *s: torch.randn(*s, dtype=torch.bfloat16) * 0.05)(B, S, D)),
            "w_r": _w((lambda *s: torch.randn(*s, dtype=torch.bfloat16) * 0.05)(D)),
            "w_gate": _w((lambda *s: torch.randn(*s, dtype=torch.bfloat16) * 0.05)(D, F)),
            "w_up": _w((lambda *s: torch.randn(*s, dtype=torch.bfloat16) * 0.05)(D, F)),
            "w_down": _w((lambda *s: torch.randn(*s, dtype=torch.bfloat16) * 0.05)(F, D)),
        }
    _B_in = _B_setup()

    return {
        "A_x": _A_in["x"],
        "A_wqkv": _A_in["wqkv"],
        "A_wo": _A_in["wo"],
        "B_x": _B_in["x"],
        "B_w_r": _B_in["w_r"],
        "B_w_gate": _B_in["w_gate"],
        "B_w_up": _B_in["w_up"],
        "B_w_down": _B_in["w_down"],
    }

def reference(A_x, A_wqkv, A_wo, B_x, B_w_r, B_w_gate, B_w_up, B_w_down):
    def _A_ref(x, wqkv, wo):
        B, S, D = x.shape
        H = 32; Dh = D // H
        W, dil = 8, 2
        qkv = (lambda x, *d: x.permute(*d))((x @ wqkv).reshape(B, S, 3, H, Dh), 2, 0, 3, 1, 4)
        q, k, v = qkv[0], qkv[1], qkv[2]
        scale = Dh ** -0.5
        pos = torch.arange(S)
        off = torch.arange(W) * dil
        idx = pos[:, None] - off[None, :]
        mask = idx >= 0
        idx_c = torch.where(mask, idx, 0).reshape(-1)
        kg = k[:, :, idx_c, :].reshape(B, H, S, W, Dh)
        vg = v[:, :, idx_c, :].reshape(B, H, S, W, Dh)
        logits = torch.einsum("bhsd,bhswd->bhsw", q, kg) * scale
        logits = torch.where(mask[None, None, :, :], logits, -1e9)
        attn = _softmax(logits, axis=-1)
        o = torch.einsum("bhsw,bhswd->bhsd", attn, vg)
        return (lambda x, *d: x.permute(*d))(o, 0, 2, 1, 3).reshape(B, S, D) @ wo

    def _B_ref(x, w_r, w_gate, w_up, w_down):
        B, S, D = x.shape
        C = 2
        r = x @ w_r
        idx = torch.argsort(-r, axis=-1)[:, :C]
        idx_e = (lambda x, n, axis: torch.repeat_interleave(x, n, dim=axis))(idx.reshape(B, C, 1), D, axis=2)
        x_sel = (lambda x, i, axis: torch.take_along_dim(x, i, dim=axis))(x, idx_e, axis=1)
        g = _silu(x_sel @ w_gate)
        u = x_sel @ w_up
        y = (g * u) @ w_down
        r_sel = _sigmoid((lambda x, i, axis: torch.take_along_dim(x, i, dim=axis))(r, idx, axis=1))
        y = y * r_sel.reshape(B, C, 1)
        b_off = (torch.arange(B) * S).reshape(B, 1)
        flat_idx = (idx + b_off).reshape(B * C)
        zero = (x * 0.0).reshape(B * S, D)
        upd = _scatter_add(zero, flat_idx, y.reshape(B * C, D), axis=0)
        return x + upd.reshape(B, S, D)

    x = A_x
    xn = _layernorm(x, axis=-1)
    return x + _A_ref(xn, A_wqkv, A_wo) + _B_ref(xn, B_w_r, B_w_gate, B_w_up, B_w_down)
```

```python
NAME = "parallel_sum__sliding_local_dilated__moe_arch_mod__prompt"
HEADER = """; Kernarg layout (88 bytes, ptrs only, base s[0:1]):
"""
class Asm:
    def __init__(self):
        self.lines = []
        self.nlabel = 0
    def __call__(self, s=""):
        for l in s.split("\n"):
            l = l.strip()
            if not l: continue
            if l.endswith(":") or l.startswith("."):
                self.lines.append(l)
            else:
                self.lines.append("    " + l)
    def label(self, base="L"):
        self.nlabel += 1
        return f"{base}_{self.nlabel}"
    def text(self):
        return "\n".join(self.lines) + "\n"

def kernel_begin(a, name):
    a(f".globl {name}")
    a(".p2align 8")
    a(f".type {name},@function")
    a(f"{name}:")

def kd(name, vgpr, sgpr=102, accum=None):
    if accum is None: accum = (vgpr + 3) // 4 * 4
    return f""".amdhsa_kernel {name}
  .amdhsa_next_free_vgpr {vgpr}
  .amdhsa_next_free_sgpr {sgpr}
  .amdhsa_accum_offset {accum}
  .amdhsa_group_segment_fixed_size 0
  .amdhsa_kernarg_size 88
  .amdhsa_user_sgpr_count 2
  .amdhsa_user_sgpr_kernarg_segment_ptr 1
  .amdhsa_system_sgpr_workgroup_id_x 1
  .amdhsa_float_denorm_mode_32 3
.end_amdhsa_kernel
"""

def wrap(launch_lines, body, kds):
    s = HEADER
    for l in launch_lines: s += "; @launch " + l + "\n"
    s += '.amdgcn_target "amdgcn-amd-amdhsa--gfx950"\n.text\n'
    s += body
    s += '.section .rodata,"a"\n'
    for k in kds:
        s += ".p2align 6\n" + k
    return s

def srd(a, d, base, nbytes):
    a(f"s_mov_b32 s{d}, s{base}")
    a(f"s_and_b32 s{d+1}, s{base+1}, 0xffff")
    a(f"s_mov_b32 s{d+2}, {nbytes}")
    a(f"s_mov_b32 s{d+3}, 0x20000")
```

```python
import sys
from asmlib import *

XN = 0
QKV = 4 << 20
O = 16 << 20
R = 20 << 20
H = 21 << 20

def wave_red(a, v, t, op="v_add_f32"):
    for r in (8, 4, 2, 1):
        a("s_nop 1")
        a(f"{op}_dpp v{v}, v{v}, v{v} row_ror:{r} row_mask:0xf bank_mask:0xf")
    for sw in ("v_permlane16_swap_b32", "v_permlane32_swap_b32"):
        a(f"v_mov_b32 v{t}, v{v}")
        a("s_nop 1")
        a(f"{sw} v{t}, v{v}")
        a("s_nop 1")
        a(f"{op} v{v}, v{v}, v{t}")

def rbf(a, v):
    a(f"v_cvt_pk_bf16_f32 v{v}, v{v}, v{v}")
    a(f"v_lshlrev_b32 v{v}, 16, v{v}")

def ptr(a, d, slot, nbytes):
    a(f"s_load_dwordx2 s[{d}:{d+1}], s[0:1], {slot*8}")
    a("s_waitcnt lgkmcnt(0)")
    a(f"s_and_b32 s{d+1}, s{d+1}, 0xffff")
    a(f"s_mov_b32 s{d+2}, {nbytes}")
    a(f"s_mov_b32 s{d+3}, 0x20000")

def k_ln(a):
    kernel_begin(a, "ln_kernel")
    a("s_cmp_ge_u32 s2, 512"); a("s_cbranch_scc1 ln_end")
    ptr(a, 4, 0, 2048*1280); ptr(a, 8, 4, 1280); ptr(a, 12, 10, 1 << 28)
    a("v_lshrrev_b32 v1, 6, v0"); a("v_and_b32 v2, 63, v0")
    a("s_lshl_b32 s3, s2, 2"); a("v_add_u32 v1, s3, v1")
    a("v_mul_u32_u24 v3, 1280, v1"); a("v_lshlrev_b32 v2, 2, v2"); a("v_add_u32 v3, v3, v2")
    for j in range(5):
        a(f"buffer_load_dword v{10+j}, v3, s[4:7], 0 offen offset:{256*j}")
        a(f"buffer_load_dword v{40+j}, v2, s[8:11], 0 offen offset:{256*j}")
    a("s_waitcnt vmcnt(0)")
    for j in range(5):
        a(f"v_lshlrev_b32 v{20+2*j}, 16, v{10+j}"); a(f"v_and_b32 v{21+2*j}, 0xffff0000, v{10+j}")
        a(f"v_lshlrev_b32 v{50+2*j}, 16, v{40+j}"); a(f"v_and_b32 v{51+2*j}, 0xffff0000, v{40+j}")
    a("v_mov_b32 v4, 0")
    for j in range(10): a(f"v_add_f32 v4, v4, v{20+j}")
    wave_red(a, 4, 5)
    a(f"v_mul_f32 v4, {1/640!r}, v4")
    a("v_mov_b32 v6, 0")
    for j in range(10):
        a(f"v_sub_f32 v7, v{20+j}, v4"); a("v_fmac_f32 v6, v7, v7")
    wave_red(a, 6, 5)
    a(f"v_mul_f32 v6, {1/640!r}, v6")
    rbf(a, 4); rbf(a, 6)
    a("v_add_f32 v6, 0x3727c5ac, v6"); rbf(a, 6)
    a("v_sqrt_f32 v6, v6"); a("s_nop 0"); rbf(a, 6)
    a("v_rcp_f32 v6, v6"); a("s_nop 0")
    a("v_mov_b32 v8, 0")
    for j in range(10):
        a(f"v_sub_f32 v{20+j}, v{20+j}, v4"); rbf(a, 20+j)
        a(f"v_mul_f32 v{20+j}, v{20+j}, v6"); rbf(a, 20+j)
        a(f"v_fmac_f32 v8, v{20+j}, v{50+j}")
    wave_red(a, 8, 5); rbf(a, 8)
    for j in range(5):
        a(f"v_cvt_pk_bf16_f32 v{10+j}, v{20+2*j}, v{21+2*j}")
        a(f"buffer_store_dword v{10+j}, v3, s[12:15], 0 offen offset:{256*j}")
    a("v_lshlrev_b32 v1, 2, v1"); a(f"s_mov_b32 s16, {R}")
    a("buffer_store_dword v8, v1, s[12:15], s16 offen")
    a("ln_end:"); a("s_endpgm")

def gemm_loop(a, name, K, srdA, sAoff, vA, srdB, vB, strideB):
    a("v_mov_b32 v10, 0"); a("v_mov_b32 v11, 0"); a("s_mov_b32 s20, 0"); a(f"s_mov_b32 s21, s{sAoff}"); a("s_mov_b32 s22, 0")
    a(f"{name}_loop:")
    a(f"buffer_load_dwordx4 v[12:15], v{vA}, s[{srdA}:{srdA+3}], s21 offen")
    for j in range(8):
        a(f"buffer_load_dword v{16+j}, v{vB}, s[{srdB}:{srdB+3}], s22 offen")
        a(f"s_add_u32 s22, s22, {strideB}")
    a("s_waitcnt vmcnt(0)")
    for j in range(8):
        if j % 2 == 0: a(f"v_lshlrev_b32 v24, 16, v{12+j//2}")
        else: a(f"v_and_b32 v24, 0xffff0000, v{12+j//2}")
        a(f"v_lshlrev_b32 v25, 16, v{16+j}"); a(f"v_and_b32 v26, 0xffff0000, v{16+j}")
        a("v_fmac_f32 v10, v24, v25"); a("v_fmac_f32 v11, v24, v26")
    a("s_add_u32 s21, s21, 16"); a("s_add_u32 s20, s20, 8")
    a(f"s_cmp_lt_u32 s20, {K}"); a(f"s_cbranch_scc1 {name}_loop")

def k_qkv(a):
    kernel_begin(a, "qkv_kernel")
    a("s_cmp_ge_u32 s2, 10240"); a("s_cbranch_scc1 qkv_end")
    ptr(a, 4, 1, 640*3840); ptr(a, 12, 10, 1 << 28)
    a("s_mul_i32 s3, s2, 13108"); a("s_lshr_b32 s3, s3, 16")
    a("s_mul_i32 s16, s3, 5"); a("s_sub_u32 s16, s2, s16"); a("s_mul_i32 s16, s16, 192")
    a("v_add_u32 v1, s16, v0"); a("v_lshlrev_b32 v1, 2, v1")
    a("s_mul_i32 s17, s3, 1280"); a("v_mov_b32 v2, 0")
    gemm_loop(a, "qkv", 640, 12, 17, 2, 4, 1, 3840)
    a("v_cvt_pk_bf16_f32 v10, v10, v11")
    a("s_mul_i32 s17, s3, 3840"); a(f"s_add_u32 s17, s17, {QKV}")
    a("buffer_store_dword v10, v1, s[12:15], s17 offen")
    a("qkv_end:"); a("s_endpgm")

def k_attn(a):
    kernel_begin(a, "attn_kernel")
    a("s_cmp_ge_u32 s2, 256"); a("s_cbranch_scc1 attn_end")
    ptr(a, 12, 10, 1 << 28)
    a("s_lshl_b32 s3, s2, 8"); a("v_add_u32 v1, s3, v0")
    a("v_lshrrev_b32 v2, 5, v1"); a("v_and_b32 v3, 31, v1")
    a("v_mul_u32_u24 v3, 40, v3")
    a("v_mul_u32_u24 v4, 3840, v2"); a("v_add_u32 v4, v4, v3")
    a(f"s_mov_b32 s16, {QKV}")
    def load20(dst, voff, off):
        for j in range(5):
            a(f"buffer_load_dwordx2 v[{100+2*j}:{101+2*j}], v{voff}, s[12:15], s16 offen offset:{off+8*j}")
        a("s_waitcnt vmcnt(0)")
        for j in range(10):
            a(f"v_lshlrev_b32 v{dst+2*j}, 16, v{100+j}"); a(f"v_and_b32 v{dst+2*j+1}, 0xffff0000, v{100+j}")
    load20(10, 4, 0)
    for w in range(8):
        a(f"v_subrev_u32 v5, {2*w}, v2"); a("v_cmp_le_i32 vcc, 0, v5"); a("v_max_i32 v5, 0, v5")
        a("v_mul_u32_u24 v5, 3840, v5"); a(f"v_add_u32 v{70+w}, v5, v3")
        load20(30, 70+w, 1280)
        a(f"v_mov_b32 v{60+w}, 0")
        for j in range(20): a(f"v_fmac_f32 v{60+w}, v{10+j}, v{30+j}")
        rbf(a, 60+w); a(f"v_mul_f32 v{60+w}, {20**-0.5!r}, v{60+w}"); rbf(a, 60+w)
        a("v_mov_b32 v6, 0xce6e6b28")
        a(f"v_cndmask_b32 v{60+w}, v6, v{60+w}, vcc")
    a("v_mov_b32 v6, v60")
    for w in range(1, 8): a(f"v_max_f32 v6, v6, v{60+w}")
    a("v_mov_b32 v7, 0")
    for w in range(8):
        a(f"v_sub_f32 v{60+w}, v{60+w}, v6"); a(f"v_mul_f32 v{60+w}, 0x3fb8aa3b, v{60+w}"); a(f"v_exp_f32 v{60+w}, v{60+w}")
        a("s_nop 0"); a(f"v_add_f32 v7, v7, v{60+w}")
    a("v_rcp_f32 v7, v7"); a("s_nop 0")
    for j in range(20): a(f"v_mov_b32 v{10+j}, 0")
    for w in range(8):
        a(f"v_mul_f32 v{60+w}, v{60+w}, v7"); rbf(a, 60+w)
        load20(30, 70+w, 2560)
        for j in range(20): a(f"v_fmac_f32 v{10+j}, v{60+w}, v{30+j}")
    a("v_mul_u32_u24 v4, 1280, v2"); a("v_add_u32 v4, v4, v3"); a(f"s_mov_b32 s16, {O}")
    for j in range(10):
        a(f"v_cvt_pk_bf16_f32 v5, v{10+2*j}, v{11+2*j}")
        a(f"buffer_store_dword v5, v4, s[12:15], s16 offen offset:{4*j}")
    a("attn_end:"); a("s_endpgm")

def top2(a):
    a("v_and_b32 v30, 63, v0"); a("v_lshlrev_b32 v31, 2, v30"); a(f"s_mov_b32 s16, {R}")
    for j in range(32):
        a(f"buffer_load_dword v{60+j}, v31, s[12:15], s16 offen offset:{(256*j)%4096}")
        if j == 15: a("s_add_u32 s16, s16, 4096")
    a("s_waitcnt vmcnt(0)")
    for j in range(32):
        a(f"v_ashrrev_i32 v32, 31, v{60+j}"); a("v_or_b32 v32, 0x80000000, v32"); a(f"v_xor_b32 v32, v32, v{60+j}")
        a("v_and_b32 v32, 0xffff0000, v32"); a(f"v_sub_u32 v33, {2047-64*j}, v30"); a(f"v_or_b32 v{60+j}, v32, v33")
    for p in range(2):
        a("v_mov_b32 v34, v60")
        for j in range(1, 32): a(f"v_max_u32 v34, v34, v{60+j}")
        wave_red(a, 34, 35, "v_max_u32")
        if p == 0:
            for j in range(32):
                a(f"v_cmp_eq_u32 vcc, v34, v{60+j}"); a("s_nop 1"); a(f"v_cndmask_b32 v{60+j}, v{60+j}, 0, vcc")
        a("v_and_b32 v36, 0x7ff, v34"); a("v_sub_u32 v36, 2047, v36"); a("s_nop 0"); a(f"v_readfirstlane_b32 s{24+p}, v36")
        a("v_and_b32 v34, 0xffff0000, v34"); a("v_not_b32 v35, v34"); a("v_ashrrev_i32 v35, 31, v35"); a("v_or_b32 v35, 0x80000000, v35")
        a("v_xor_b32 v34, v34, v35"); a(f"v_and_b32 v{50+p}, 0xffff0000, v34")

def k_moe(a):
    kernel_begin(a, "moe_kernel")
    a("s_cmp_ge_u32 s2, 27"); a("s_cbranch_scc1 moe_end")
    ptr(a, 4, 5, 640*3456); ptr(a, 8, 6, 640*3456); ptr(a, 12, 10, 1 << 28)
    top2(a)
    a("v_and_b32 v1, 31, v0"); a("s_lshl_b32 s3, s2, 5"); a("v_add_u32 v1, s3, v1"); a("v_lshlrev_b32 v1, 2, v1")
    a("v_cmp_gt_u32 vcc, 32, v0"); a("v_mov_b32 v2, s24"); a("v_mov_b32 v3, s25"); a("v_cndmask_b32 v2, v3, v2, vcc")
    a("v_mul_u32_u24 v2, 1280, v2"); a("s_mov_b32 s17, 0")
    gemm_loop(a, "gate", 640, 12, 17, 2, 4, 1, 3456)
    a("v_mov_b32 v40, v10"); a("v_mov_b32 v41, v11")
    gemm_loop(a, "up", 640, 12, 17, 2, 8, 1, 3456)
    for g, u in ((40, 10), (41, 11)):
        rbf(a, g); rbf(a, u)
        a(f"v_mul_f32 v42, 0xbfb8aa3b, v{g}"); a("v_exp_f32 v42, v42"); a("s_nop 0"); a("v_add_f32 v42, 1.0, v42"); a("v_rcp_f32 v42, v42"); a("s_nop 0")
        a(f"v_mul_f32 v{g}, v{g}, v42"); rbf(a, g); a(f"v_mul_f32 v{g}, v{g}, v{u}")
    a("v_cvt_pk_bf16_f32 v40, v40, v41")
    a("v_lshrrev_b32 v3, 5, v0"); a("v_mul_u32_u24 v3, 3456, v3"); a("v_add_u32 v3, v3, v1"); a(f"s_mov_b32 s16, {H}")
    a("buffer_store_dword v40, v3, s[12:15], s16 offen")
    for p in range(2):
        a(f"v_mul_f32 v42, 0xbfb8aa3b, v{50+p}"); a("v_exp_f32 v42, v42"); a("s_nop 0"); a("v_add_f32 v42, 1.0, v42"); a(f"v_rcp_f32 v{46+p}, v42"); a("s_nop 0"); rbf(a, 46+p)
    a("v_mov_b32 v44, s24"); a("v_mov_b32 v45, s25"); a("v_mov_b32 v3, 0"); a(f"s_mov_b32 s16, {H+0x8000}")
    a("buffer_store_dwordx4 v[44:47], v3, s[12:15], s16 offen")
    a("moe_end:"); a("s_endpgm")

def k_out(a):
    kernel_begin(a, "out_kernel")
    a("s_cmp_ge_u32 s2, 2048"); a("s_cbranch_scc1 out_end")
    ptr(a, 4, 2, 640*1280); ptr(a, 8, 7, 1728*1280); ptr(a, 12, 10, 1 << 28); ptr(a, 28, 0, 2048*1280); ptr(a, 32, 8, 2048*1280)
    a("v_lshlrev_b32 v1, 2, v0"); a("v_mov_b32 v2, 0")
    a("s_mul_i32 s18, s2, 1280"); a(f"s_add_u32 s17, s18, {O}")
    gemm_loop(a, "oproj", 640, 12, 17, 2, 4, 1, 1280)
    a("v_mov_b32 v40, v10"); a("v_mov_b32 v41, v11"); rbf(a, 40); rbf(a, 41)
    a("buffer_load_dword v42, v1, s[28:31], s18 offen"); a("buffer_load_dword v43, v1, s[12:15], s18 offen")
    a(f"s_mov_b32 s16, {H+0x8000}"); a("buffer_load_dwordx4 v[44:47], v2, s[12:15], s16 offen")
    a("s_waitcnt vmcnt(0)")
    a("v_readfirstlane_b32 s24, v44"); a("v_readfirstlane_b32 s25, v45")
    a("v_lshlrev_b32 v50, 16, v42"); a("v_and_b32 v51, 0xffff0000, v42"); a("v_lshlrev_b32 v52, 16, v43"); a("v_and_b32 v53, 0xffff0000, v43")
    a("v_add_f32 v40, v40, v50"); a("v_add_f32 v41, v41, v51"); rbf(a, 40); rbf(a, 41)
    a(f"s_mov_b32 s17, {H}")
    a("s_cmp_eq_u32 s2, s24"); a("s_cbranch_scc1 out_sel")
    a(f"s_mov_b32 s17, {H+3456}"); a("v_mov_b32 v46, v47")
    a("s_cmp_eq_u32 s2, s25"); a("s_cbranch_scc0 out_fin")
    a("out_sel:")
    gemm_loop(a, "down", 1728, 12, 17, 2, 8, 1, 1280)
    rbf(a, 10); rbf(a, 11); a("v_mul_f32 v10, v10, v46"); a("v_mul_f32 v11, v11, v46"); rbf(a, 10); rbf(a, 11)
    a("v_add_f32 v52, v52, v10"); a("v_add_f32 v53, v53, v11"); rbf(a, 52); rbf(a, 53)
    a("out_fin:")
    a("v_add_f32 v40, v40, v52"); a("v_add_f32 v41, v41, v53"); a("v_cvt_pk_bf16_f32 v40, v40, v41")
    a("buffer_store_dword v40, v1, s[32:35], s18 offen")
    a("out_end:"); a("s_endpgm")

def k_empty(a):
    kernel_begin(a, "empty_kernel"); a("s_endpgm")

def k_chase(a, slot, nbytes, n, stride, base=0):
    kernel_begin(a, "chase_kernel")
    a("s_cmp_ge_u32 s2, 1"); a("s_cbranch_scc1 chase_end")
    ptr(a, 4, slot, nbytes)
    a(f"v_mov_b32 v1, {base}"); a("s_mov_b32 s3, 0")
    a("chase_loop:")
    a("buffer_load_dword v2, v1, s[4:7], 0 offen")
    a("s_waitcnt vmcnt(0)")
    a("v_and_b32 v2, 0, v2"); a(f"v_add_u32 v1, {stride}, v1"); a("v_add_u32 v1, v1, v2")
    a("s_add_u32 s3, s3, 1"); a(f"s_cmp_lt_u32 s3, {n}"); a("s_cbranch_scc1 chase_loop")
    a("chase_end:"); a("s_endpgm")

def gen(nempty=0, chase=None):
    a = Asm()
    k_ln(a); k_qkv(a); k_attn(a); k_moe(a); k_out(a)
    L = []; kds = [kd(n, 128) for n in ("ln_kernel", "qkv_kernel", "attn_kernel", "moe_kernel", "out_kernel")]
    if chase:
        k_chase(a, *chase); kds.append(kd("chase_kernel", 32)); L.append("kernel=chase_kernel grid=(1,1,1) block=(64,1,1) lds=0")
    if nempty:
        k_empty(a); kds.append(kd("empty_kernel", 32))
        L += ["kernel=empty_kernel grid=(256,1,1) block=(256,1,1) lds=0"] * nempty
    L += ["kernel=ln_kernel grid=(512,1,1) block=(256,1,1) lds=0",
          "kernel=qkv_kernel grid=(10240,1,1) block=(192,1,1) lds=0",
          "kernel=attn_kernel grid=(256,1,1) block=(256,1,1) lds=0",
          "kernel=moe_kernel grid=(27,1,1) block=(64,1,1) lds=0",
          "kernel=out_kernel grid=(2048,1,1) block=(320,1,1) lds=0"]
    return wrap(L, a.text(), kds)

if __name__ == "__main__":
    open("naive0.s", "w").write(gen())
    open("naive_e20.s", "w").write(gen(nempty=20))
    open("naive_cx.s", "w").write(gen(chase=(0, 2048*1280, 400, 6400)))
    open("naive_cd.s", "w").write(gen(chase=(7, 1728*1280, 400, 5120)))
    open("naive_cw.s", "w").write(gen(chase=(10, 1<<28, 400, 6400)))
    open("naive_co.s", "w").write(gen(chase=(8, 2048*1280, 400, 6400)))
```

```python
import sys
from asmlib import *

def stamp(a, idx, sreg=90, vtmp=250):
    a(f"s_memrealtime s[{sreg}:{sreg+1}]")
    a("s_waitcnt lgkmcnt(0)")
    a(f"s_mov_b32 s{70+idx}, s{sreg}")

def flush_stamps(a, n):
    a("s_load_dwordx2 s[92:93], s[0:1], 80")
    a("s_waitcnt lgkmcnt(0)")
    srd(a, 96, 92, 0x10000000)
    a("s_lshl_b32 s61, s60, 6")
    a(f"s_add_u32 s61, s61, {200<<20}")
    a("v_mov_b32 v1, 0")
    a("v_cmp_eq_u32 vcc, 0, v0")
    a("s_and_saveexec_b64 s[62:63], vcc")
    l = a.label("skip")
    a(f"s_cbranch_execz {l}")
    for i in range(n):
        a(f"v_mov_b32 v2, s{70+i}")
        a(f"buffer_store_dword v2, v1, s[96:99], s61 offen offset:{4*i}")
    a(f"{l}:")

def gen(mapping="ii", depth=2, moe=True, nslots=3, nt='', rot=None, wonly=False, xonly=False, full_lines=False):
    a = Asm()
    kn = NAME + "_kernel"
    kernel_begin(a, kn)
    a("s_cmp_ge_u32 s2, 256")
    a("s_cbranch_scc1 L_end")
    a("s_mov_b32 s60, s2")
    a("s_memrealtime s[90:91]")
    a("s_load_dwordx4 s[4:7], s[0:1], 0")
    a("s_load_dwordx4 s[12:15], s[0:1], 40")
    a("s_load_dwordx2 s[16:17], s[0:1], 56")
    a("s_and_b32 s20, s2, 7")
    a("s_lshr_b32 s21, s2, 3")
    if mapping == "ii":
        a("s_and_b32 s23, s21, 7")
        a("s_lshr_b32 s25, s21, 3")
        a("s_lshl_b32 s22, s20, 2")
        a("s_mul_i32 s26, s20, 3")
        a("s_add_u32 s26, s26, 4")
        a("s_cmp_ge_u32 s20, 4")
        a("s_cselect_b32 s22, s26, s22")
        a("s_cselect_b32 s27, 3, 4")
        a("s_add_u32 s22, s22, s25")
        a("s_sub_u32 s24, s20, 4")
        a("s_lshl_b32 s24, s24, 3")
        a("s_add_u32 s24, s24, s23")
        a("s_cmp_ge_u32 s25, s27")
        a("s_cselect_b32 s24, s24, -1")
    elif mapping == "i":
        a("s_mov_b32 s23, s20")
        a("s_mov_b32 s22, s21")
        a("s_sub_u32 s24, s21, 28")
        a("s_lshl_b32 s24, s24, 3")
        a("s_add_u32 s24, s24, s20")
        a("s_cmp_ge_u32 s21, 28")
        a("s_cselect_b32 s24, s24, -1")
    elif mapping == "iii":
        a("s_and_b32 s23, s20, 3")
        a("s_lshl_b32 s23, s23, 1")
        a("s_and_b32 s25, s21, 1")
        a("s_add_u32 s23, s23, s25")
        a("s_lshr_b32 s25, s20, 2")
        a("s_mul_i32 s22, s25, 14")
        a("s_lshr_b32 s25, s21, 1")
        a("s_add_u32 s22, s22, s25")
        a("s_sub_u32 s24, s21, 28")
        a("s_lshl_b32 s24, s24, 3")
        a("s_add_u32 s24, s24, s20")
        a("s_cmp_ge_u32 s21, 28")
        a("s_cselect_b32 s24, s24, -1")
    elif mapping == "iv":
        a("s_and_b32 s23, s20, 1")
        a("s_lshl_b32 s23, s23, 2")
        a("s_and_b32 s25, s21, 3")
        a("s_add_u32 s23, s23, s25")
        a("s_lshr_b32 s25, s20, 1")
        a("s_mul_i32 s22, s25, 7")
        a("s_lshr_b32 s25, s21, 2")
        a("s_add_u32 s22, s22, s25")
        a("s_sub_u32 s24, s21, 28")
        a("s_lshl_b32 s24, s24, 3")
        a("s_add_u32 s24, s24, s20")
        a("s_cmp_ge_u32 s21, 28")
        a("s_cselect_b32 s24, s24, -1")
    a("v_lshrrev_b32 v1, 6, v0")
    a("v_and_b32 v2, 63, v0")
    a("s_nop 0")
    a("v_readfirstlane_b32 s28, v1")
    a("s_waitcnt lgkmcnt(0)")
    a("s_mov_b32 s70, s90")
    stamp(a, 1)
    srd(a, 32, 4, 2048*1280)
    srd(a, 36, 6, 640*3840)
    a("s_cmp_lg_u32 s24, -1")
    a("s_cbranch_scc1 L_moe")
    a("s_cmp_ge_u32 s22, 14")
    a("s_cselect_b32 s29, 1, 0")
    a("s_mul_i32 s30, s29, 14")
    a("s_sub_u32 s30, s22, s30")
    a("s_mul_i32 s30, s30, 146")
    a("s_add_u32 s30, s30, s29")
    a("s_mul_i32 s30, s30, 1280")
    a("s_mul_i32 s31, s23, 160")
    if full_lines:
        a("s_and_b32 s31, s31, 0xffffff80")
    def xoff(dst, s_i):
        a(f"s_lshl_b32 s40, s{s_i}, 6")
        a(f"v_add_u32 v3, s40, v2")
        a("v_lshrrev_b32 v4, 3, v3")
        a("v_and_b32 v5, 7, v3")
        a("v_bfe_u32 v6, v4, 1, 3")
        a("v_xor_b32 v5, v5, v6")
        a("v_mul_u32_u24 v4, 2560, v4")
        a("v_lshl_add_u32 v4, v5, 4, v4")
        a(f"v_add_u32 v{dst}, s30, v4")
    def woff(dst, s_i):
        a(f"s_lshl_b32 s40, s{s_i}, 6")
        a(f"v_add_u32 v3, s40, v2")
        if full_lines:
            a("v_mul_u32_u24 v4, 2731, v3")
            a("v_lshrrev_b32 v4, 16, v4")
            a("v_mul_u32_u24 v5, 24, v4")
            a("v_sub_u32 v5, v3, v5")
            a("v_lshrrev_b32 v6, 3, v5")
            a("v_and_b32 v5, 7, v5")
            a("v_mul_u32_u24 v4, 3840, v4")
            a("v_mul_u32_u24 v6, 1280, v6")
            a("v_add_u32 v4, v4, v6")
            a("v_lshl_add_u32 v4, v5, 4, v4")
            a(f"v_add_u32 v{dst}, s31, v4")
            return
        a("v_mul_u32_u24 v4, 2185, v3")
        a("v_lshrrev_b32 v4, 16, v4")
        a("v_mul_u32_u24 v5, 30, v4")
        a("v_sub_u32 v5, v3, v5")
        a("v_mul_u32_u24 v6, 26, v5")
        a("v_lshrrev_b32 v6, 8, v6")
        a("v_mul_u32_u24 v7, 10, v6")
        a("v_sub_u32 v5, v5, v7")
        a("v_lshrrev_b32 v7, 1, v4")
        a("v_xor_b32 v7, v7, v4")
        a("v_and_b32 v7, 4, v7")
        a("v_mul_u32_u24 v7, 3, v7")
        a("v_xor_b32 v4, v4, v7")
        a("v_mul_u32_u24 v4, 3840, v4")
        a("v_mul_u32_u24 v6, 1280, v6")
        a("v_add_u32 v4, v4, v6")
        a("v_lshl_add_u32 v4, v5, 4, v4")
        a(f"v_add_u32 v{dst}, s31, v4")
    wstep = 64*3840 if not full_lines else 64*3840
    for n in range(2):
        a(f"s_add_u32 s41, s28, {4*n}")
        xoff(10+n, 41)
        a(f"s_lshl_b32 s{50+n}, s41, 10")
    a("s_add_u32 s41, s28, 8"); xoff(20, 41)
    a("s_add_u32 s42, s28, 26"); woff(21, 42)
    a("s_add_u32 s42, s42, 10")
    a("s_cmp_lt_u32 s28, 2")
    a("s_cselect_b32 s52, s41, s42")
    a("s_lshl_b32 s52, s52, 10")
    a("s_cmp_lt_u32 s28, 2")
    a("s_cselect_b64 vcc, -1, 0")
    a("s_cselect_b32 s44, s32, s36")
    a("s_cselect_b32 s45, s33, s37")
    a("s_cselect_b32 s46, s34, s38")
    a("s_mov_b32 s47, 0x20000")
    a("s_movk_i32 s49, 128")
    a(f"s_cselect_b32 s48, s49, {wstep}")
    a("v_cndmask_b32 v12, v21, v20, vcc")
    for n in range(3, 10):
        a(f"s_add_u32 s41, s28, {4*(n-3)}")
        woff(10+n, 41)
        a("s_add_u32 s41, s41, 10")
        a(f"s_lshl_b32 s{50+n}, s41, 10")
    if rot is None:
        a("s_mov_b32 s69, 0")
    else:
        ca, cb = rot
        a(f"s_mul_i32 s69, s22, {ca}")
        a(f"s_mul_i32 s43, s23, {cb}")
        a("s_add_u32 s69, s69, s43")
        a("s_mul_i32 s43, s69, 6554")
        a("s_lshr_b32 s43, s43, 16")
        a("s_mul_i32 s43, s43, 10")
        a("s_sub_u32 s69, s69, s43")
    a("s_mul_i32 s64, s69, 128")
    a(f"s_mul_i32 s65, s69, {wstep}")
    a("s_mul_i32 s66, s69, s48")
    a("s_mov_b32 s67, 0")
    a("s_mov_b32 s68, 0")
    stamp(a, 2)
    SLOT = 40960
    mod = (" " + nt if nt else "")
    a("L_loop:")
    cnt = 0
    for n in range(10):
        if wonly and n < 2: continue
        if xonly and n >= 2: continue
        cnt += 1
        a(f"s_add_u32 m0, s67, s{50+n}")
        sr, so = (32, 64) if n < 2 else ((44, 66) if n == 2 else (36, 65))
        a("s_nop 0")
        a(f"buffer_load_dwordx4 v{10+n}, s[{sr}:{sr+3}], s{so} offen{mod} lds")
    a("s_add_u32 s64, s64, 128")
    a(f"s_add_u32 s65, s65, {wstep}")
    a("s_add_u32 s66, s66, s48")
    a("s_cmp_eq_u32 s64, 1280")
    a("s_cselect_b32 s64, 0, s64")
    a("s_cselect_b32 s65, 0, s65")
    a("s_cselect_b32 s66, 0, s66")
    a(f"s_add_u32 s67, s67, {SLOT}")
    a(f"s_cmp_eq_u32 s67, {SLOT*nslots}")
    a("s_cselect_b32 s67, 0, s67")
    a(f"s_waitcnt vmcnt({min(63,cnt*depth)})")
    a("s_barrier")
    l = a.label("ns")
    a(f"s_cmp_lg_u32 s68, {depth}")
    a(f"s_cbranch_scc1 {l}")
    stamp(a, 3)
    a(f"{l}:")
    a("s_add_u32 s68, s68, 1")
    a("s_cmp_lt_u32 s68, 10")
    a("s_cbranch_scc1 L_loop")
    a("s_waitcnt vmcnt(0)")
    a("s_barrier")
    stamp(a, 4)
    a("s_branch L_fin")
    a("L_moe:")
    stamp(a, 2)
    if moe:
        srd(a, 40, 12, 640*3456)
        srd(a, 44, 14, 640*3456)
        srd(a, 48, 16, 1728*1280)
        a("s_mul_i32 s30, s24, 81920")
        a("v_lshlrev_b32 v3, 4, v0")
        for n in range(20):
            a(f"s_add_u32 s31, s30, {n*4096}")
            a(f"buffer_load_dwordx4 v[{20+4*n}:{23+4*n}], v3, s[32:35], s31 offen")
        a("v_lshrrev_b32 v4, 3, v0")
        a("v_mul_u32_u24 v4, 3456, v4")
        a("v_and_b32 v5, 7, v0")
        a("v_lshl_add_u32 v4, v5, 4, v4")
        a("s_lshl_b32 s30, s24, 7")
        a("s_cmp_ge_u32 s24, 27")
        a("s_cbranch_scc1 L_moe_now")
        a("s_waitcnt vmcnt(0)")
        stamp(a, 3)
        for n in range(20):
            a(f"s_add_u32 s31, s30, {n*32*3456}")
            a(f"buffer_load_dwordx4 v[{20+4*n}:{23+4*n}], v4, s[40:43], s31 offen")
            a(f"buffer_load_dwordx4 v[{100+4*n}:{103+4*n}], v4, s[44:47], s31 offen")
        a("s_mul_i32 s30, s24, 81920")
        for n in range(20):
            a(f"s_add_u32 s31, s30, {n*4096}")
            a(f"buffer_load_dwordx4 v[{180+4*(n%16)}:{183+4*(n%16)}], v3, s[48:51], s31 offen")
        a("s_branch L_moe2")
        a("L_moe_now:")
        a("s_waitcnt vmcnt(0)")
        stamp(a, 3)
        a("L_moe2:")
        a("s_waitcnt vmcnt(0)")
        a("s_barrier")
    else:
        stamp(a, 3)
    stamp(a, 4)
    a("L_fin:")
    flush_stamps(a, 5)
    a("L_end:")
    a("s_endpgm")
    return wrap([f"grid=(256,1,1) block=(256,1,1) lds={SLOT*nslots}"], a.text(), [kd(kn, 256)])

if __name__ == "__main__":
    for m in ("nt", "sc1", "sc0", "sc0 sc1", "sc1 nt"):
        open(f"mb1_iv_{m.replace(' ','')}.s", "w").write(gen("iv", moe=False, nt=m))
    open("mb1_iv_nomoe.s", "w").write(gen("iv", moe=False))
    for m in ("i","ii","iii","iv"):
        open(f"mb1_{m}_rot31.s", "w").write(gen(m, rot=(3,1)))
        open(f"mb1_{m}_rot10.s", "w").write(gen(m, rot=(1,0)))
        open(f"mb1_{m}_rot33.s", "w").write(gen(m, rot=(3,3)))
```

```python
from asmlib import *
import naive
from mb1 import stamp, flush_stamps

def k_stream(a, name, nwg, per, base, stamps, nthreads=256, mod=""):
    kernel_begin(a, name)
    a(f"s_cmp_ge_u32 s2, {nwg}"); a("s_cbranch_scc1 st_end")
    a("s_mov_b32 s60, s2")
    if stamps: stamp(a, 0)
    naive.ptr(a, 4, 10, 1 << 28)
    a(f"s_mul_i32 s8, s2, {per}"); a(f"s_add_u32 s8, s8, {base}")
    a("v_lshlrev_b32 v1, 4, v0"); a("s_mov_b32 s9, 0")
    step = nthreads * 16
    a("st_loop:")
    for j in range(16):
        a(f"buffer_load_dwordx4 v[{4+4*j}:{7+4*j}], v1, s[4:7], s8 offen {mod}")
        a(f"s_add_u32 s8, s8, {step}")
        a("s_waitcnt vmcnt(15)")
    a(f"s_add_u32 s9, s9, {16*step}"); a(f"s_cmp_lt_u32 s9, {per}"); a("s_cbranch_scc1 st_loop")
    a("s_waitcnt vmcnt(0)"); a("s_barrier")
    if stamps:
        stamp(a, 1); flush_stamps(a, 2)
    a("st_end:"); a("s_endpgm")

def k_chase(a, name, n, stride, slot, nbytes):
    kernel_begin(a, name)
    a("s_cmp_ge_u32 s2, 1"); a("s_cbranch_scc1 chase_end")
    a("s_mov_b32 s60, s2")
    naive.ptr(a, 4, slot, nbytes)
    stamp(a, 0)
    a(f"v_mov_b32 v1, 0"); a("s_mov_b32 s3, 0")
    a("chase_loop:")
    a("buffer_load_dword v2, v1, s[4:7], 0 offen")
    a("s_waitcnt vmcnt(0)")
    a("v_and_b32 v2, 0, v2"); a(f"v_add_u32 v1, {stride}, v1"); a("v_add_u32 v1, v1, v2")
    a("s_add_u32 s3, s3, 1"); a(f"s_cmp_lt_u32 s3, {n}"); a("s_cbranch_scc1 chase_loop")
    stamp(a, 1); flush_stamps(a, 2)
    a("chase_end:"); a("s_endpgm")

def own(nwg, per, nthreads=256, mod=""):
    a = Asm(); kn = NAME + "_kernel"
    k_stream(a, kn, nwg, per, 32 << 20, True, nthreads, mod)
    return wrap([f"grid=({nwg},1,1) block=({nthreads},1,1) lds=100000"], a.text(), [kd(kn, 128)])

def harness(nwg, per, nthreads=256, mod=""):
    s = naive.gen()
    a = Asm(); k_stream(a, "stream_kernel", nwg, per, 32 << 20, False, nthreads, mod)
    s = s.replace("; @launch kernel=ln_kernel", f"; @launch kernel=stream_kernel grid=({nwg},1,1) block=({nthreads},1,1) lds=100000\n; @launch kernel=ln_kernel")
    s = s.replace('.section .rodata,"a"\n', a.text() + '.section .rodata,"a"\n.p2align 6\n' + kd("stream_kernel", 128))
    return s

if __name__ == "__main__":
    a = Asm(); kn = NAME + "_kernel"; k_chase(a, kn, 400, 6400, 0, 2048*1280)
    open("mb2_chase.s", "w").write(wrap(["grid=(1,1,1) block=(64,1,1) lds=0"], a.text(), [kd(kn, 32)]))
    for nwg, per in ((1, 4 << 20), (32, 4 << 20), (256, 1 << 19)):
        open(f"mb2_own_{nwg}.s", "w").write(own(nwg, per))
        open(f"mb2_h_{nwg}.s", "w").write(harness(nwg, per))
    open(f"mb2_own_32_1024.s", "w").write(own(32, 4 << 20, 1024))
    open(f"mb2_own_32_nt.s", "w").write(own(32, 4 << 20, 256, "nt"))
    open(f"mb2_h_32_nt.s", "w").write(harness(32, 4 << 20, 256, "nt"))
```

```python
import re
TRANS = ("v_exp_f32", "v_log_f32", "v_rcp_f32", "v_rsq_f32", "v_sqrt_f32", "v_sin_f32", "v_cos_f32")
def regs(op):
    op = op.strip()
    op = re.sub(r"^-|^abs\(|\)$|^\|", "", op).rstrip("|")
    m = re.fullmatch(r"([vsa])(\d+)", op)
    if m: return {(m.group(1), int(m.group(2)))}
    m = re.fullmatch(r"([vsa])\[(\d+):(\d+)\]", op)
    if m: return {(m.group(1), i) for i in range(int(m.group(2)), int(m.group(3)) + 1)}
    if op == "vcc": return {("s", "vcc")}
    if op in ("vcc_lo", "vcc_hi"): return {("s", "vcc")}
    if op == "m0": return {("s", "m0")}
    if op in ("exec", "exec_lo", "exec_hi"): return {("s", "exec")}
    return set()
class I:
    def __init__(self, line):
        self.line = line
        s = line.split(";")[0].strip()
        self.is_inst = bool(s) and not s.endswith(":") and not s.startswith(".")
        self.defs = set(); self.uses = set(); self.kind = None; self.states = 0
        if not self.is_inst: return
        parts = s.split(None, 1); self.op = op = parts[0]
        base = re.sub(r"_(e32|e64|dpp|sdwa)$", "", op); self.base = base
        rest = parts[1] if len(parts) > 1 else ""
        ops = [o.strip() for o in re.split(r",(?![^\[]*\])", rest)]
        ops = [o.split()[0] if o else o for o in ops]
        self.states = 1
        if op == "s_nop": self.states = int(rest, 0) + 1
        R = [regs(o) for o in ops]
        U = lambda l: set().union(*l) if l else set()
        self.dpp = "_dpp" in op or "row_" in rest or "quad_perm" in rest
        if op.startswith("v_mfma"):
            self.kind = "mfma"; self.defs = R[0]; self.A = R[1]; self.B = R[2]; self.C = R[3]; self.uses = U(R[1:])
            self.passes = 8 if "32x32" in op else 4
        elif op.startswith("v_"):
            self.kind = "valu"
            if "permlane" in op and "swap" in op: self.defs = U(R[:2]); self.uses = U(R[:2])
            elif base in ("v_add_co_u32", "v_sub_co_u32", "v_addc_co_u32"): self.defs = U(R[:2]); self.uses = U(R[2:])
            else:
                self.defs = R[0]; self.uses = U(R[1:])
                if base in ("v_fmac_f32", "v_dot2c_f32_bf16", "v_writelane_b32") or self.dpp: self.uses |= R[0]
        elif op.startswith("ds_"):
            self.kind = "ds"
            if "read" in op or "rtn" in op or "permute" in op: self.defs = R[0]; self.uses = U(R[1:])
            else: self.uses = U(R)
        elif op.startswith("buffer_") or op.startswith("global_"):
            self.kind = "vmem"; self.lds = bool(re.search(r"\blds\b", rest)) or "_lds_" in op
            self.data = set()
            if "load" in op and not self.lds: self.defs = R[0]; self.uses = U(R[1:])
            else:
                self.uses = U(R)
                if "store" in op and ("x4" in op or "x3" in op): self.data = R[0] if op.startswith("buffer_") else R[1]
        elif op.startswith("s_"):
            self.kind = "salu"
            if op.startswith(("s_cmp", "s_cbranch", "s_branch", "s_waitcnt", "s_barrier", "s_nop", "s_sleep", "s_setprio", "s_endpgm", "s_bitcmp")): self.uses = U(R)
            else: self.defs = R[0]; self.uses = U(R[1:])
def need(p, c):
    n = 0
    V = lambda s: {r for r in s if r[0] in "va"}
    S = lambda s: {r for r in s if r[0] == "s"}
    if p.kind == "valu":
        vd = V(p.defs); sd = S(p.defs)
        if c.kind == "valu":
            if vd & c.uses:
                if c.dpp or "permlane" in c.op: n = max(n, 2)
                if c.base in ("v_readfirstlane_b32", "v_readlane_b32"): n = max(n, 1)
                if p.base in TRANS and c.base not in TRANS: n = max(n, 1)
            if sd & c.uses: n = max(n, 4 if c.base in ("v_readlane_b32", "v_writelane_b32") else 2)
            if p.base.startswith("v_dot") and vd & (c.uses | c.defs):
                if c.base != p.base: n = max(n, 3)
                else:
                    pass
        if c.kind == "mfma" and vd & c.uses: n = max(n, 3 if p.base.startswith("v_dot") else 2)
        if c.kind == "vmem" and sd & c.uses: n = max(n, 5)
        if c.kind in ("vmem", "ds") and p.base.startswith("v_dot") and vd & c.uses: n = max(n, 3)
        if c.kind in ("vmem", "ds") and p.base in TRANS and vd & c.uses: n = max(n, 1)
    if p.kind == "mfma":
        big = p.passes == 8
        if c.kind == "mfma":
            if p.defs & (c.A | c.B): n = max(n, 12 if big else 8)
            if p.defs & c.C and not (p.defs == c.C and p.passes == c.passes): n = max(n, 10 if big else 6)
            if p.defs & c.defs and not (p.defs == c.C): n = max(n, 10 if big else 6)
        elif c.kind in ("valu", "vmem", "ds"):
            if p.defs & (c.uses | c.defs): n = max(n, 12 if big else 8)
            if c.kind == "valu" and p.C & c.defs: n = max(n, 7 if big else 3)
    if p.kind == "vmem" and getattr(p, "data", None):
        if p.data & c.defs: n = max(n, 2 if c.kind in ("valu", "mfma") else 1)
    if p.kind == "salu" and ("s", "m0") in p.defs and c.kind == "vmem" and c.lds: n = max(n, 1)
    return n
def fix(lines, verbose=False):
    out = []; hist = []
    added = 0
    for l in lines:
        c = I(l)
        if c.is_inst:
            dist = 0; req = 0
            for p in reversed(hist):
                if dist >= 12: break
                r = need(p, c) - dist
                if r > req: req = r
                dist += p.states
            if req > 0:
                nop = I(f"    s_nop {req-1}"); out.append(nop.line); hist.append(nop); added += 1
                if verbose: print("nop", req, "before", l.strip())
            hist.append(c)
            if c.op in ("s_branch", "s_endpgm"): hist = []
        out.append(l)
    return out, added
```

```python
import sys, math
from asmlib import *
import hazard

SLOT = 38912
XPART = 14336
MISC = 3 * SLOT
QB = MISC + 4096
LDS_BYTES = 163840
WO = SLOT - 4096
M_STATS = MISC + 64
M_Y = MISC + 1024
M_SEL = MISC + 1536
W_EPOCH = 0
W_ACK = 0x1000
W_STATS = 0x2000
W_CAND = 0xB000
W_HDR = 0xC000
W_YP = 0x10000
W_TILE = 0x40000
TILE_STRIDE = 0x50000
T_O = 0
T_XCH = 0x23000
T_FLAG = 0x46000
WS_BYTES = 1 << 28
TAGC = 0x01010101
BIG = 0xf149f2ca
QSCALE = 20 ** -0.5 * math.log2(math.e)
SPIN = 1 << 18

def fl(x):
    import struct
    return hex(struct.unpack("<I", struct.pack("<f", x))[0])

def stag_order():
    o = []
    for r in range(5):
        l = [(r + i) % 5 for i in range(5)]
        l.insert(1 + r, 5 + r)
        l += [s for s in range(5, 10) if s != 5 + r]
        o.append(l)
    return o

class G:
    def __init__(self, stamps=False, order=None, ncarry=11):
        self.a = Asm(); self.stamps = stamps; self.order = order or stag_order(); self.ncarry = ncarry
    def stamp(self, i):
        if not self.stamps: return
        a = self.a
        a("s_memrealtime s[78:79]"); a("s_waitcnt lgkmcnt(0)"); a(f"s_mov_b32 s{80+i}, s78")
    def spin_begin(self, name):
        self.a(f"s_mov_b32 s{S_SPIN}, {SPIN}"); self.a(f"{name}:")
    def spin_end(self, name, sleep=0):
        a = self.a; done = name + "_ok"
        a(f"s_cbranch_scc0 {done}")
        if sleep: a(f"s_sleep {sleep}")
        a(f"s_sub_u32 s{S_SPIN}, s{S_SPIN}, 1"); a(f"s_cmp_lg_u32 s{S_SPIN}, 0"); a(f"s_cbranch_scc1 {name}")
        a(f"{done}:")

SX, SW, SWO, SWS, SOUT = 8, 12, 16, 20, 24
S_XCD, S_IDX, S_WAVE, S_TAG = 28, 29, 30, 31
S_TL, S_CC, S_C, S_J, S_P, S_TILE = 32, 33, 34, 35, 36, 37
S_XB, S_WB, S_SWAP, S_ORD = 38, 39, 40, 42
S_LDSW = 41
S_T = 44
S_TB = 45
S_SPIN = 46
S_A, S_B, S_Cc, S_D, S_E, S_F = 47, 48, 49, 50, 51, 52
S_XO, S_WOF, S_SLOT, S_I = 53, 54, 55, 56
S_M = 58
S_TMP2 = 70
S_TB0 = 74

def gen(stamps=False, order=None, ncarry=11):
    g = G(stamps, order, ncarry); a = g.a
    kn = NAME + "_kernel"
    kernel_begin(a, kn)
    a(f"s_load_dwordx2 s[{SX}:{SX+1}], s[0:1], 0")
    a(f"s_load_dwordx2 s[{SW}:{SW+1}], s[0:1], 8")
    a(f"s_load_dwordx2 s[{SWS}:{SWS+1}], s[0:1], 80")
    a(f"s_load_dwordx2 s[{SWO}:{SWO+1}], s[0:1], 16")
    a(f"s_load_dwordx2 s[{SOUT}:{SOUT+1}], s[0:1], 64")
    if stamps:
        for i in range(2, 16): a(f"s_mov_b32 s{80+i}, 0")
        a("s_memrealtime s[80:81]")
    a("s_cmp_ge_u32 s2, 256"); a("s_cbranch_scc1 L_end")
    a("v_lshrrev_b32 v1, 6, v0"); a("v_and_b32 v0, 63, v0")
    a(f"s_and_b32 s{S_XCD}, s2, 7"); a(f"s_lshr_b32 s{S_IDX}, s2, 3")
    a(f"v_readfirstlane_b32 s{S_WAVE}, v1")
    for s, n in ((SX, 2048*1280), (SW, 640*3840), (SWO, 640*1280), (SWS, WS_BYTES), (SOUT, 2048*1280)):
        a(f"s_mov_b32 s{s+2}, {n}"); a(f"s_mov_b32 s{s+3}, 0x20000")
    a(f"s_cmp_ge_u32 s{S_IDX}, 25"); a("s_cbranch_scc1 L_aux")
    a(f"s_mul_i32 s{S_TL}, s{S_IDX}, 52"); a(f"s_lshr_b32 s{S_TL}, s{S_TL}, 8")
    a(f"s_mul_i32 s{S_A}, s{S_TL}, 5"); a(f"s_sub_u32 s{S_CC}, s{S_IDX}, s{S_A}")
    a(f"s_and_b32 s{S_A}, s{S_XCD}, 1"); a(f"s_mul_i32 s{S_A}, s{S_A}, 5"); a(f"s_add_u32 s{S_C}, s{S_A}, s{S_CC}")
    a(f"s_bfe_u32 s{S_A}, s{S_XCD}, 0x10001"); a(f"s_mul_i32 s{S_A}, s{S_A}, 5"); a(f"s_add_u32 s{S_J}, s{S_A}, s{S_TL}")
    a(f"s_lshr_b32 s{S_P}, s{S_XCD}, 2")
    a(f"s_mul_i32 s{S_A}, s{S_J}, 208"); a(f"s_add_u32 s{S_A}, s{S_A}, s{S_P}"); a(f"s_mul_i32 s{S_XB}, s{S_A}, 1280")
    VX, VW, VWO = 2, 3, 4
    a(f"s_lshr_b32 s{S_A}, s{S_XCD}, 1"); a(f"s_xor_b32 s{S_A}, s{S_A}, s{S_XCD}"); a(f"s_and_b32 s{S_A}, s{S_A}, 1"); a(f"s_mul_i32 s{S_SWAP}, s{S_A}, 5")
    a(f"s_add_u32 s{S_B}, s{S_TL}, s{S_CC}"); a(f"s_cmp_ge_u32 s{S_B}, 5"); a(f"s_cselect_b32 s{S_A}, 5, 0"); a(f"s_sub_u32 s{S_B}, s{S_B}, s{S_A}")
    for r in range(5):
        v = sum(g.order[r][i] << (4*i) for i in range(10))
        if r == 0:
            a(f"s_mov_b32 s{S_ORD}, {v & 0xffffffff}"); a(f"s_mov_b32 s{S_ORD+1}, {v >> 32}")
        else:
            a(f"s_cmp_eq_u32 s{S_B}, {r}")
            a(f"s_cselect_b32 s{S_ORD}, {v & 0xffffffff}, s{S_ORD}"); a(f"s_cselect_b32 s{S_ORD+1}, {v >> 32}, s{S_ORD+1}")
    a("v_lshrrev_b32 v5, 3, v0"); a("v_and_b32 v6, 7, v0")
    a(f"s_and_b32 s{S_A}, s{S_WAVE}, 1"); a(f"s_lshl_b32 s{S_A}, s{S_A}, 2")
    a("v_lshrrev_b32 v7, 1, v5"); a(f"v_or_b32 v7, s{S_A}, v7"); a("v_xor_b32 v7, v7, v6")
    a(f"v_mul_u32_u24 v{VX}, 2560, v5"); a(f"v_lshl_add_u32 v{VX}, v7, 4, v{VX}")
    a("v_and_b32 v7, 2, v5"); a(f"v_or_b32 v7, s{S_A}, v7"); a("v_xor_b32 v7, v7, v6")
    a(f"v_mul_u32_u24 v{VW}, 3840, v5"); a(f"v_lshl_add_u32 v{VW}, v7, 4, v{VW}")
    a("v_and_b32 v7, 6, v5"); a("v_xor_b32 v7, v7, v6")
    a(f"v_mul_u32_u24 v{VWO}, 1280, v5"); a(f"v_lshl_add_u32 v{VWO}, v7, 4, v{VWO}")
    S_XBW = S_D
    a(f"s_mul_i32 s{S_A}, s{S_WAVE}, {8*2560}"); a(f"s_add_u32 s57, s{S_XB}, s{S_A}")
    a(f"s_mul_i32 s{S_A}, s{S_WAVE}, {8*3840}"); a(f"s_lshl_b32 s{S_WB}, s{S_C}, 7"); a(f"s_add_u32 s{S_WB}, s{S_WB}, s{S_A}")
    a(f"s_lshl_b32 s{S_LDSW}, s{S_WAVE}, 10")
    a(f"s_mov_b32 s{S_SLOT}, s{S_LDSW}")
    def next_stage():
        a(f"s_and_b32 s{S_A}, s{S_ORD}, 15"); a(f"s_lshr_b64 s[{S_ORD}:{S_ORD+1}], s[{S_ORD}:{S_ORD+1}], 4")
        a(f"s_add_u32 s{S_A}, s{S_A}, s{S_SWAP}"); a(f"s_cmp_ge_u32 s{S_A}, 10"); a(f"s_cselect_b32 s{S_B}, 10, 0"); a(f"s_sub_u32 s{S_A}, s{S_A}, s{S_B}")
        a(f"s_lshl_b32 s{S_XO}, s{S_A}, 7"); a(f"s_add_u32 s{S_XO}, s{S_XO}, s57")
        a(f"s_mul_i32 s{S_WOF}, s{S_A}, {64*3840}"); a(f"s_add_u32 s{S_WOF}, s{S_WOF}, s{S_WB}")
    def wpiece(n):
        a(f"s_add_u32 m0, s{S_SLOT}, {XPART + n*4096}")
        off = (n >> 1) * 1280 + (n & 1) * 32 * 3840
        if off: a(f"s_add_u32 s{S_A}, s{S_WOF}, {off}")
        a(f"buffer_load_dwordx4 v{VW}, s[{SW}:{SW+3}], s{S_A if off else S_WOF} offen lds")
    def xpiece(n):
        if n: a(f"s_add_u32 m0, s{S_SLOT}, {n*4096}")
        else: a(f"s_mov_b32 m0, s{S_SLOT}")
        if n: a(f"s_add_u32 s{S_A}, s{S_XO}, {n*32*2560}")
        a(f"buffer_load_dwordx4 v{VX}, s[{SX}:{SX+3}], s{S_A if n else S_XO} offen lds")
    def first7():
        wpiece(0); xpiece(0); xpiece(1); xpiece(2); wpiece(2); wpiece(4); wpiece(1)
    def late():
        wpiece(3); wpiece(5)
        l = a.label("L_nox3")
        a(f"s_cmp_ge_u32 s{S_WAVE}, 2"); a(f"s_cbranch_scc1 {l}")
        a(f"s_cmp_eq_u32 s{S_WAVE}, 1"); a("s_cselect_b32 exec_hi, 0x00ffffff, -1")
        xpiece(3)
        a("s_mov_b32 exec_hi, -1")
        a(f"{l}:")
        a(f"s_add_u32 s{S_SLOT}, s{S_SLOT}, {SLOT}"); a(f"s_cmp_ge_u32 s{S_SLOT}, {3*SLOT}"); a(f"s_cselect_b32 s{S_SLOT}, s{S_LDSW}, s{S_SLOT}")
    a(f"s_cmp_ge_u32 s{S_WAVE}, 4"); a("s_cbranch_scc1 L_setup_wait")
    next_stage()
    a("s_waitcnt lgkmcnt(0)")
    first7()
    a("L_setup_wait:")
    a("s_waitcnt lgkmcnt(0)")
    a(f"s_load_dword s{S_TAG}, s[{SWS}:{SWS+1}], {W_EPOCH}")
    g.stamp(1)
    VI, VG, VSIG, VL16 = 5, 6, 7, 8
    VQ1, VQ2, VV = 10, 14, 18
    BA, BP, MA = 28, 32, 36
    VXO, VOO = 38, 39
    ONES = 40
    VWA = 44
    T0 = 48
    a(f"s_cmp_ge_u32 s{S_WAVE}, 4"); a(f"s_cselect_b32 s{S_A}, 1, 0"); a(f"s_sub_u32 s{S_T}, s{S_WAVE}, s{S_A}")
    a(f"s_lshr_b32 s{S_A}, s{S_XCD}, 1"); a(f"s_mul_i32 s{S_A}, s{S_A}, 5"); a(f"s_add_u32 s{S_TILE}, s{S_A}, s{S_TL}")
    a(f"s_mul_i32 s{S_TB}, s{S_TILE}, {TILE_STRIDE}"); a(f"s_add_u32 s{S_TB}, s{S_TB}, {W_TILE}")
    a(f"v_and_b32 v{VI}, 15, v0"); a(f"v_lshrrev_b32 v{VG}, 4, v0"); a(f"v_lshlrev_b32 v{VL16}, 4, v0")
    def sigma(dst, src, t1):
        a(f"v_and_b32 v{dst}, 1, v{src}"); a(f"v_bfe_u32 v{t1}, v{src}, 3, 1"); a(f"v_lshl_or_b32 v{dst}, v{t1}, 1, v{dst}")
        a(f"v_bfe_u32 v{t1}, v{src}, 1, 2"); a(f"v_lshl_or_b32 v{dst}, v{t1}, 2, v{dst}")
    sigma(VSIG, VI, T0)
    a(f"s_lshl_b32 s{S_B}, s{S_T}, 11")
    a(f"s_add_u32 s{S_Cc}, s{S_B}, {QB}")
    a(f"v_lshl_add_u32 v{T0+1}, v{VI}, 7, s{S_Cc}")
    a(f"v_mov_b32 v{T0+2}, {MISC}")
    a(f"v_subrev_u32 v{T0+3}, s{S_CC}, v{VG}")
    a(f"v_cmp_eq_u32 s[{S_TMP2}:{S_TMP2+1}], 0, v{VG}")
    for s in range(4):
        a(f"v_add_u32 v{T0+4}, {5*s}, v{T0+3}")
        a(f"v_cmp_gt_u32 vcc, 16, v{T0+4}")
        a(f"v_xor_b32 v{T0+5}, v{T0+4}, v{VSIG}"); a(f"v_lshl_add_u32 v{T0+5}, v{T0+5}, 3, v{T0+1}")
        a(f"v_cndmask_b32 v{VQ1+s}, v{T0+2}, v{T0+5}, vcc")
        a(f"v_add_u32 v{T0+4}, 4, v{T0+4}")
        a(f"v_cmp_gt_u32 vcc, 16, v{T0+4}")
        a(f"v_xor_b32 v{T0+5}, v{T0+4}, v{VSIG}"); a(f"v_lshl_add_u32 v{T0+5}, v{T0+5}, 3, v{T0+1}")
        a(f"s_and_b64 vcc, vcc, s[{S_TMP2}:{S_TMP2+1}]")
        a(f"v_cndmask_b32 v{VQ2+s}, v{T0+2}, v{T0+5}, vcc")
    PV = [(0, 1), (1, 1), (1, 2), (2, 1), (2, 2), (3, 2), (0, 0), (1, 0), (2, 3), (3, 3)]
    a(f"v_lshrrev_b32 v{T0+4}, 2, v0"); sigma(T0+5, T0+4, T0+6)
    a(f"s_add_u32 s{S_Cc}, s{S_B}, {QB + 2*XPART - 2048}")
    a(f"v_lshl_add_u32 v{T0+4}, v{T0+4}, 7, s{S_Cc}")
    a(f"v_and_b32 v{T0+6}, 3, v0")
    for T in range(4):
        a(f"v_add_u32 v{T0+7}, {4*T}, v{T0+6}")
        a(f"v_add_u32 v{T0+8}, s{S_CC}, v{T0+7}"); a(f"v_mul_u32_u24 v{T0+8}, 52, v{T0+8}"); a(f"v_lshrrev_b32 v{T0+8}, 8, v{T0+8}")
        a(f"v_xor_b32 v{T0+7}, v{T0+7}, v{T0+5}"); a(f"v_lshl_add_u32 v{T0+7}, v{T0+7}, 3, v{T0+4}")
        for k, (tt, s) in enumerate(PV):
            if tt == T:
                a(f"v_cmp_eq_u32 vcc, {s}, v{T0+8}"); a(f"v_cndmask_b32 v{VV+k}, v{T0+2}, v{T0+7}, vcc")
    SELM = [(0, 0), (1, 0), (1, 2), (2, 1), (2, 3), (3, 3)]
    for k, (T, s) in enumerate(SELM):
        a(f"v_add_u32 v{T0+7}, s{S_CC}, v{VG}"); a(f"v_add_u32 v{T0+7}, {4*T}, v{T0+7}"); a(f"v_mul_u32_u24 v{T0+7}, 52, v{T0+7}"); a(f"v_lshrrev_b32 v{T0+7}, 8, v{T0+7}")
        a(f"v_cmp_eq_u32 s[{S_M+2*k}:{S_M+2*k+1}], {s}, v{T0+7}")
    a(f"v_lshlrev_b32 v{T0+4}, 2, v{VG}"); a(f"v_sub_u32 v{T0+4}, v{VI}, v{T0+4}")
    a(f"v_mov_b32 v{T0+5}, {BIG}")
    a(f"s_cmp_eq_u32 s{S_T}, 0"); a(f"s_cselect_b32 s{S_A}, -64, -9")
    a(f"v_mov_b32 v{T0+8}, 0xffff"); a(f"v_mov_b32 v{T0+9}, 0xffff0000")
    for r in range(4):
        a(f"v_subrev_u32 v{T0+6}, {r}, v{T0+4}")
        a(f"v_cmp_gt_u32 vcc, 8, v{T0+6}"); a(f"v_cndmask_b32 v{BA+r}, v{T0+5}, 0, vcc")
        a(f"v_cmp_ge_i32 vcc, s{S_A}, v{T0+6}"); a(f"v_cndmask_b32 v{BP+r}, v{T0+5}, 0, vcc")
        a(f"v_cmp_le_i32 vcc, 0, v{T0+6}")
        if r % 2 == 0: a(f"v_cndmask_b32 v{MA+r//2}, 0, v{T0+8}, vcc")
        else:
            a(f"v_cndmask_b32 v{T0+7}, 0, v{T0+9}, vcc"); a(f"v_or_b32 v{MA+r//2}, v{MA+r//2}, v{T0+7}")
    for r in range(4): a(f"v_mov_b32 v{ONES+r}, 0x3f803f80")
    a(f"s_lshl_b32 s{S_A}, s{S_T}, 4"); a(f"v_add_u32 v{T0+4}, s{S_A}, v{VI}")
    a(f"s_lshl_b32 s{S_A}, s{S_C}, 7"); a(f"s_add_u32 s{S_A}, s{S_A}, s{S_XB}")
    a(f"v_mul_u32_u24 v{T0+5}, 2560, v{T0+4}"); a(f"v_add_u32 v{T0+5}, s{S_A}, v{T0+5}")
    a(f"v_lshl_add_u32 v{VXO}, v{VG}, 3, v{T0+5}")
    a(f"v_and_b32 v{T0+6}, 1, v{VG}"); a(f"v_lshl_add_u32 v{T0+5}, v{T0+6}, 5, v{T0+5}")
    a(f"v_lshrrev_b32 v{T0+6}, 1, v{VG}"); a(f"v_lshl_add_u32 v{T0+5}, v{T0+6}, 4, v{T0+5}")
    a(f"s_cmp_eq_u32 s{S_J}, 0"); a(f"s_cselect_b32 s{S_A}, 0, 7"); a(f"s_sub_u32 s{S_B}, 111, s{S_A}")
    a(f"v_subrev_u32 v{T0+4}, s{S_A}, v{T0+4}"); a(f"v_cmp_gt_u32 vcc, s{S_B}, v{T0+4}")
    a(f"v_mov_b32 v{T0+6}, 0x7f000000"); a(f"v_cndmask_b32 v{VOO}, v{T0+6}, v{T0+5}, vcc")
    a(f"v_lshrrev_b32 v{T0+4}, 2, v0"); a(f"v_bfe_u32 v{T0+5}, v0, 3, 2"); a(f"v_and_b32 v{T0+6}, 3, v0")
    a(f"v_lshlrev_b32 v{T0+4}, 7, v{T0+4}"); a(f"v_lshl_add_u32 v{T0+4}, v{T0+6}, 3, v{T0+4}"); a(f"v_add_u32 v{T0+4}, {WO}, v{T0+4}")
    for T in range(4):
        a(f"v_xor_b32 v{T0+6}, {T}, v{T0+5}"); a(f"v_lshl_add_u32 v{VWA+T}, v{T0+6}, 5, v{T0+4}")
    a("s_waitcnt lgkmcnt(0)")
    a(f"s_add_u32 s{S_TAG}, s{S_TAG}, {TAGC}")
    for k in range(4): a(f"s_bfe_u32 s{S_TB0+k}, s{S_TAG}, {(8 << 16) | (8*k)}")
    a(f"s_cmp_ge_u32 s{S_WAVE}, 4"); a("s_cbranch_scc1 L_compute")
    g.stamp(2)
    late(); next_stage(); first7()
    a(f"s_mov_b32 s{S_I}, 0")
    a("L_ld_loop:")
    a("s_waitcnt vmcnt(7)"); a("s_barrier")
    if stamps:
        l = a.label("L_ns"); a(f"s_cmp_lg_u32 s{S_I}, 0"); a(f"s_cbranch_scc1 {l}"); g.stamp(3); a(f"{l}:")
    late(); next_stage(); first7()
    a(f"s_add_u32 s{S_I}, s{S_I}, 1"); a(f"s_cmp_lt_u32 s{S_I}, 8"); a("s_cbranch_scc1 L_ld_loop")
    def wopieces(ns):
        for n in ns:
            a(f"s_add_u32 m0, s{S_LDSW}, {WO + n*4096}")
            a(f"s_add_u32 s{S_A}, s{S_WOF}, {n*4*10240}")
            a(f"buffer_load_dwordx4 v{VWO}, s[{SWO}:{SWO+3}], s{S_A} offen lds")
    a("s_waitcnt vmcnt(7)"); a("s_barrier")
    late()
    a(f"s_mul_i32 s{S_A}, s{S_WAVE}, 10240"); a(f"s_lshl_b32 s{S_WOF}, s{S_C}, 7"); a(f"s_add_u32 s{S_WOF}, s{S_WOF}, s{S_A}")
    wopieces(range(1, 8))
    a("s_waitcnt vmcnt(7)"); a("s_barrier")
    g.stamp(4)
    a(f"s_cmp_lt_u32 s{S_WAVE}, 2"); a("s_cbranch_scc1 L_nostats")
    a(f"s_sub_u32 s{S_A}, s{S_WAVE}, 2"); a(f"s_lshl_b32 s{S_A}, s{S_A}, 6"); a(f"v_add_u32 v{T0}, s{S_A}, v0")
    a(f"s_mul_i32 s{S_A}, s{S_J}, 104"); a(f"v_add_u32 v{T0+1}, s{S_A}, v{T0}")
    a(f"v_cmp_gt_u32 vcc, 111, v{T0}"); a(f"s_movk_i32 s{S_B}, 1024"); a(f"v_cmp_gt_u32 s[{S_TMP2}:{S_TMP2+1}], s{S_B}, v{T0+1}")
    a(f"s_and_b64 s[{S_TMP2}:{S_TMP2+1}], s[{S_TMP2}:{S_TMP2+1}], vcc")
    a(f"v_lshlrev_b32 v{T0+1}, 4, v{T0+1}"); a(f"s_lshl_b32 s{S_B}, s{S_P}, 14"); a(f"s_add_u32 s{S_B}, s{S_B}, {W_STATS}")
    g.spin_begin("L_stpoll")
    a(f"buffer_load_dwordx4 v[{T0+4}:{T0+7}], v{T0+1}, s[{SWS}:{SWS+3}], s{S_B} offen sc1")
    a("s_waitcnt vmcnt(0)")
    a(f"v_cmp_ne_u32 vcc, s{S_TAG}, v{T0+7}"); a(f"s_and_b64 vcc, vcc, s[{S_TMP2}:{S_TMP2+1}]")
    g.spin_end("L_stpoll")
    a(f"v_cndmask_b32 v{T0+4}, 0, v{T0+4}, s[{S_TMP2}:{S_TMP2+1}]"); a(f"v_cndmask_b32 v{T0+5}, 1.0, v{T0+5}, s[{S_TMP2}:{S_TMP2+1}]")
    a(f"v_min_u32 v{T0}, 112, v{T0}"); a(f"v_lshlrev_b32 v{T0}, 3, v{T0}"); a(f"v_add_u32 v{T0}, {M_STATS}, v{T0}")
    a(f"ds_write_b64 v{T0}, v[{T0+4}:{T0+5}]")
    a("L_nostats:")
    wopieces(range(8, 14))
    a("s_waitcnt lgkmcnt(0)"); a("s_barrier")
    wopieces(list(range(14, 20)) + [0])
    a("s_branch L_attn")
    a("L_compute:")
    ACC, F0, F1 = 48, 132, 172
    XA0, XA1, WA, VST = 212, 213, 214, 215
    TT = 216
    acc = lambda m, t: ACC + (m*7 + t)*4
    a(f"s_sub_u32 s{S_A}, s{S_WAVE}, 4")
    a(f"v_bfe_u32 v{TT}, v0, 1, 3"); a(f"v_xor_b32 v{TT}, v{TT}, v{VG}"); a(f"v_lshlrev_b32 v{XA0}, 7, v{VI}"); a(f"v_lshl_add_u32 v{XA0}, v{TT}, 4, v{XA0}")
    a(f"v_xor_b32 v{XA1}, 64, v{XA0}")
    a(f"v_bfe_u32 v{TT}, v0, 2, 2"); a(f"v_lshl_add_u32 v{TT}, v{VG}, 3, v{TT}"); a(f"v_lshlrev_b32 v{WA}, 7, v{TT}")
    a(f"v_bfe_u32 v{TT}, v0, 3, 2"); a(f"v_xor_b32 v{TT}, s{S_A}, v{TT}"); a(f"v_lshl_add_u32 v{WA}, v{TT}, 5, v{WA}")
    a(f"v_and_b32 v{TT}, 3, v0"); a(f"v_lshl_add_u32 v{WA}, v{TT}, 3, v{WA}"); a(f"v_add_u32 v{WA}, {XPART}, v{WA}")
    a(f"s_lshl_b32 s{S_B}, s{S_A}, 2"); a(f"v_add_u32 v{TT}, s{S_B}, v{VG}"); a(f"v_xor_b32 v{TT}, v{TT}, v{VSIG}")
    a(f"v_lshlrev_b32 v{VST}, 7, v{VI}"); a(f"v_lshl_add_u32 v{VST}, v{TT}, 3, v{VST}"); a(f"v_add_u32 v{VST}, {QB}, v{VST}")
    a(f"s_mul_i32 s{S_B}, s{S_A}, {SLOT}"); a(f"s_add_u32 s{S_B}, s{S_B}, {111*128}")
    a(f"v_and_b32 v{TT}, 31, v0"); a(f"v_lshl_add_u32 v{TT}, v{TT}, 2, s{S_B}"); a(f"v_mov_b32 v{TT+1}, v{ONES}")
    a(f"s_cmp_eq_u32 s{S_A}, 3"); a("s_cbranch_scc0 L_notz")
    a(f"v_and_b32 v{TT}, 1, v0"); a(f"v_bfe_u32 v{TT+1}, v0, 1, 1"); a(f"v_lshlrev_b32 v{TT}, 2, v{TT}"); a(f"v_lshl_add_u32 v{TT}, v{TT+1}, 11, v{TT}")
    a(f"v_add_u32 v{TT}, {MISC}, v{TT}"); a(f"v_mov_b32 v{TT+1}, 0")
    a("L_notz:")
    a(f"ds_write_b32 v{TT}, v{TT+1}")
    for r in list(range(ACC, ACC+84)) + list(range(F1, F1+40)): a(f"v_mov_b32 v{r}, 0")
    a(f"s_mov_b32 s{S_I}, 0"); a(f"s_mov_b32 s{S_SLOT}, 0")
    a("s_waitcnt lgkmcnt(0)")
    g.stamp(2)
    def reads(F, ks):
        L = []
        def w(m):
            for jj in range(2): L.append((("w", m, jj), f"ds_read_b64_tr_b16 v[{F+4*m+2*jj}:{F+4*m+2*jj+1}], v{WA} offset:{m*8192 + ks*4096 + jj*512}"))
        def x(t): L.append((("x", t), f"ds_read_b128 v[{F+12+4*t}:{F+15+4*t}], v{XA1 if ks else XA0} offset:{t*2048}"))
        w(0); x(6); x(0); w(1); x(1); x(2); w(2); x(3); x(4); x(5)
        return L
    MORD = [(0,6),(0,0),(1,6),(1,0),(0,1),(1,1),(0,2),(1,2),(2,6),(2,0),(2,1),(2,2),(0,3),(1,3),(2,3),(0,4),(1,4),(2,4),(0,5),(1,5),(2,5)]
    assert len(set(MORD)) == 21
    def mfma(F, m, t): return f"v_mfma_f32_16x16x32_bf16 v[{acc(m,t)}:{acc(m,t)+3}], v[{F+4*m}:{F+4*m+3}], v[{F+12+4*t}:{F+15+4*t}], v[{acc(m,t)}:{acc(m,t)+3}]"
    nc = g.ncarry
    a(".p2align 3")
    a("L_c_loop:")
    a("s_barrier")
    if stamps:
        l = a.label("L_ns"); a(f"s_cmp_lg_u32 s{S_I}, 0"); a(f"s_cbranch_scc1 {l}"); g.stamp(3); a(f"{l}:")
    issued = []
    state = {"done": 0}
    def emit_read(set_id, key, txt):
        a(txt); issued.append((set_id,) + key)
    def ensure(keys):
        last = max(issued.index(k) for k in keys) + 1
        if last > state["done"]:
            a(f"s_waitcnt lgkmcnt({len(issued) - last})"); state["done"] = last
    need = lambda sid, m, t: [(sid, "w", m, 0), (sid, "w", m, 1), (sid, "x", t)]
    R0 = reads(F0, 0); R1 = reads(F1, 1)
    carried = MORD[21-nc:]
    k = 0
    for n in range(3): emit_read(0, *R0[n])
    ri = 3
    for (m, t) in carried:
        a(mfma(F1, m, t))
        if ri < 13: emit_read(0, *R0[ri]); ri += 1
    while ri < 13: emit_read(0, *R0[ri]); ri += 1
    ri = 0
    for i, (m, t) in enumerate(MORD):
        ensure(need(0, m, t)); a(mfma(F0, m, t))
        if i >= 3 and ri < 13 and len(issued) - state["done"] < 14: emit_read(1, *R1[ri]); ri += 1
    assert ri == 13
    a(f"s_add_u32 s{S_SLOT}, s{S_SLOT}, 1"); a(f"s_cmp_eq_u32 s{S_SLOT}, 3")
    a(f"s_cselect_b32 s{S_SLOT}, 0, s{S_SLOT}"); a(f"s_mov_b32 s{S_B}, {SLOT}"); a(f"s_cselect_b32 s{S_B}, {-2*SLOT}, s{S_B}")
    for i, (m, t) in enumerate(MORD[:21-nc]):
        ensure(need(1, m, t)); a(mfma(F1, m, t))
        if i == 1: a(f"v_add_u32 v{XA0}, s{S_B}, v{XA0}")
        if i == 2: a(f"v_add_u32 v{XA1}, s{S_B}, v{XA1}")
        if i == 3: a(f"v_add_u32 v{WA}, s{S_B}, v{WA}")
    a(f"s_add_u32 s{S_I}, s{S_I}, 1"); a(f"s_cmp_lt_u32 s{S_I}, 10")
    a("s_waitcnt lgkmcnt(0)")
    a("s_cbranch_scc1 L_c_loop")
    for (m, t) in carried: a(mfma(F1, m, t))
    a("s_barrier")
    g.stamp(4)
    ST, CS = F0, F0 + 16
    a(f"v_lshlrev_b32 v{TT}, 3, v{VI}"); a(f"v_add_u32 v{TT}, {M_STATS}, v{TT}")
    for t in range(7): a(f"ds_read_b64 v[{ST+2*t}:{ST+2*t+1}], v{TT} offset:{t*128}")
    for m in range(3):
        for r in range(4): a(f"v_mov_b32_dpp v{CS+4*m+r}, v{acc(m,6)+r} row_newbcast:15 row_mask:0xf bank_mask:0xf")
    a("s_waitcnt lgkmcnt(0)")
    PK = F1
    n = 0
    for m in range(3):
        for t in (6, 0, 1, 2, 3, 4, 5):
            A = acc(m, t); s = ST + 2*t
            for h in range(2):
                a(f"v_pk_fma_f32 v[{A+2*h}:{A+2*h+1}], v[{CS+4*m+2*h}:{CS+4*m+2*h+1}], v[{s}:{s+1}], v[{A+2*h}:{A+2*h+1}] op_sel_hi:[1,0,1]")
            if m:
                for h in range(2):
                    a(f"v_pk_mul_f32 v[{A+2*h}:{A+2*h+1}], v[{A+2*h}:{A+2*h+1}], v[{s}:{s+1}] op_sel:[0,1] op_sel_hi:[1,1]")
            p = PK + 2*(n % 8); n += 1
            for h in range(2): a(f"v_cvt_pk_bf16_f32 v{p+h}, v{A+2*h}, v{A+2*h+1}")
            a(f"ds_write_b64 v{VST}, v[{p}:{p+1}] offset:{m*XPART + t*2048}")
    a("s_waitcnt lgkmcnt(0)")
    a("L_attn:")
    a("s_barrier")
    g.stamp(5)
    a(f"s_cmp_eq_u32 s{S_WAVE}, 3"); a("s_cbranch_scc1 L_collect")
    Q, KA, KP = 48, 64, 80
    SA, SP = 96, 112
    VF = 128
    PB = 168
    OT = 184
    SUM = 200
    XR = 216
    XS = 224
    NM = 232
    RQ = 234; MX = 236
    TM = 244
    issued.clear(); state["done"] = 0
    def rd(key, txt): a(txt); issued.append(key)
    def ens(keys):
        last = max(issued.index(k) for k in keys) + 1
        if last > state["done"]:
            a(f"s_waitcnt lgkmcnt({min(15, len(issued) - last)})"); state["done"] = last
    def rd_qk(s):
        rd(("q", s, 0), f"ds_read_b64 v[{Q+4*s}:{Q+4*s+1}], v{VQ1+s}")
        rd(("q", s, 1), f"ds_read_b64 v[{Q+4*s+2}:{Q+4*s+3}], v{VQ2+s}")
        rd(("ka", s, 0), f"ds_read_b64 v[{KA+4*s}:{KA+4*s+1}], v{VQ1+s} offset:{XPART}")
        rd(("ka", s, 1), f"ds_read_b64 v[{KA+4*s+2}:{KA+4*s+3}], v{VQ2+s} offset:{XPART}")
        rd(("kp", s, 0), f"ds_read_b64 v[{KP+4*s}:{KP+4*s+1}], v{VQ1+s} offset:{XPART-2048}")
        rd(("kp", s, 1), f"ds_read_b64 v[{KP+4*s+2}:{KP+4*s+3}], v{VQ2+s} offset:{XPART-2048}")
    def s_mfma(s):
        ens([("ka", s, 1)]); a(f"v_mfma_f32_16x16x32_bf16 v[{SA+4*s}:{SA+4*s+3}], v[{KA+4*s}:{KA+4*s+3}], v[{Q+4*s}:{Q+4*s+3}], v[{BA}:{BA+3}]")
        ens([("kp", s, 1)]); a(f"v_mfma_f32_16x16x32_bf16 v[{SP+4*s}:{SP+4*s+3}], v[{KP+4*s}:{KP+4*s+3}], v[{Q+4*s}:{Q+4*s+3}], v[{BP}:{BP+3}]")
    def merge(s):
        for r in range(4): a(f"v_max_f32 v{SA+4*s+r}, v{SA+4*s+r}, v{SP+4*s+r}")
    def rd_v(k):
        rd(("v", k, 0), f"ds_read_b64_tr_b16 v[{VF+4*k}:{VF+4*k+1}], v{VV+k}")
        rd(("v", k, 1), f"ds_read_b64_tr_b16 v[{VF+4*k+2}:{VF+4*k+3}], v{VV+k} offset:2048")
    def softmax_pair(s0, s1):
        m0, m1 = MX, MX + 2
        for s, m in ((s0, m0), (s1, m1)):
            A = SA + 4*s
            a(f"v_max3_f32 v{m}, v{A}, v{A+1}, v{A+2}"); a(f"v_max_f32 v{m}, v{m}, v{A+3}")
        a(f"v_permlane32_swap_b32 v{m0}, v{m1}"); a(f"v_max_f32 v{m0}, v{m0}, v{m1}"); a(f"v_mov_b32 v{m1}, v{m0}")
        a(f"v_permlane16_swap_b32 v{m0}, v{m1}"); a(f"v_max_f32 v{m0}, v{m0}, v{m1}")
        a(f"v_mul_f32 v{m0}, v{m0}, v{RQ}"); a(f"v_mov_b32 v{m1}, v{m0}")
        a(f"v_permlane32_swap_b32 v{m0}, v{m1}")
        for s, m in ((s0, m0), (s1, m1)):
            A = SA + 4*s
            for h in range(2):
                a(f"v_pk_fma_f32 v[{A+2*h}:{A+2*h+1}], v[{A+2*h}:{A+2*h+1}], v[{RQ}:{RQ+1}], v[{m}:{m+1}] op_sel_hi:[1,0,0] neg_lo:[0,0,1] neg_hi:[0,0,1]")
        for s in (s0, s1):
            for r in range(4): a(f"v_exp_f32 v{SA+4*s+r}, v{SA+4*s+r}")
        for s in (s0, s1):
            A = SA + 4*s; P = PB + 4*s
            for h in range(2): a(f"v_cvt_pk_bf16_f32 v{P+h}, v{A+2*h}, v{A+2*h+1}")
            for h in range(2): a(f"v_and_b32 v{P+2+h}, v{P+h}, v{MA+h}")
            for h in range(2): a(f"v_xor_b32 v{P+h}, v{P+h}, v{P+2+h}")
    first = set()
    def pv(ks):
        for k in ks:
            T, s = PV[k]; ens([("v", k, 1)])
            c = f"v[{OT+4*T}:{OT+4*T+3}]" if T in first else "0"; first.add(T)
            a(f"v_mfma_f32_16x16x32_bf16 v[{OT+4*T}:{OT+4*T+3}], v[{VF+4*k}:{VF+4*k+3}], v[{PB+4*s}:{PB+4*s+3}], {c}")
    def summ(s): a(f"v_mfma_f32_16x16x32_bf16 v[{SUM+4*s}:{SUM+4*s+3}], v[{ONES}:{ONES+3}], v[{PB+4*s}:{PB+4*s+3}], 0")
    rd_qk(0); rd_qk(3)
    a(f"s_lshl_b32 s{S_A}, s{S_T}, 7"); a(f"s_add_u32 s{S_A}, s{S_A}, {M_STATS}"); a(f"v_lshl_add_u32 v{TM}, v{VI}, 3, s{S_A}")
    a(f"s_mul_i32 s{S_A}, s{S_C}, 14"); a(f"s_add_u32 s{S_A}, s{S_A}, s{S_T}"); a(f"s_lshl_b32 s{S_A}, s{S_A}, 10")
    a(f"s_add_u32 s{S_A}, s{S_A}, s{S_TB}"); a(f"s_add_u32 s{S_D}, s{S_A}, {T_XCH}")
    s_mfma(0)
    rd(("nm",), f"ds_read_b64 v[{NM}:{NM+1}], v{TM}")
    rd_qk(1)
    s_mfma(3)
    rd_qk(2)
    a(f"v_mov_b32 v{TM+1}, 0xffffff00")
    merge(0); merge(3)
    s_mfma(1)
    for e, s in ((0, 0), (1, 3)):
        for r in range(4): a(f"v_and_or_b32 v{XS+4*e+r}, v{SA+4*s+r}, v{TM+1}, s{S_TB0+r}")
    s_mfma(2)
    a(f"s_sub_u32 s{S_E}, s{S_D}, {7*1024}")
    a(f"s_cmp_eq_u32 s{S_CC}, 0"); a("s_cbranch_scc1 L_nol")
    a(f"buffer_store_dwordx4 v[{XS}:{XS+3}], v{VL16}, s[{SWS}:{SWS+3}], s{S_E} offen sc1")
    a("L_nol:")
    a(f"s_cmp_eq_u32 s{S_CC}, 4"); a("s_cbranch_scc1 L_nor")
    a(f"buffer_store_dwordx4 v[{XS+4}:{XS+7}], v{VL16}, s[{SWS}:{SWS+3}], s{S_D} offen sc1")
    a("L_nor:")
    g.stamp(6)
    if stamps: state["done"] = len(issued)
    for k in range(6): rd_v(k)
    ens([("nm",)])
    a(f"v_mul_f32 v{RQ}, {fl(QSCALE)}, v{NM+1}")
    merge(1); merge(2)
    softmax_pair(1, 2)
    summ(1); pv([0, 1, 3]); summ(2); pv([2, 4, 5])
    for k in range(6, 10): rd_v(k)
    a(f"s_sub_u32 s{S_E}, s{S_D}, {14*1024}"); a(f"s_add_u32 s{S_D}, s{S_D}, {7*1024}")
    a(f"s_mov_b32 s{S_F}, 0x0c0c0400")
    g.stamp(7)
    if stamps: state["done"] = len(issued)
    for e, s, sreg, skipcc in ((0, 0, S_E, 0), (1, 3, S_D, 4)):
        nm = f"L_xp{e}"
        a(f"s_cmp_eq_u32 s{S_CC}, {skipcc}"); a(f"s_cbranch_scc1 {nm}_skip")
        g.spin_begin(nm)
        X = XR + 4*e
        a(f"buffer_load_dwordx4 v[{X}:{X+3}], v{VL16}, s[{SWS}:{SWS+3}], s{sreg} offen sc1")
        a("s_waitcnt vmcnt(0)")
        a(f"v_perm_b32 v{TM}, v{X+1}, v{X}, s{S_F}"); a(f"v_perm_b32 v{TM+1}, v{X+3}, v{X+2}, s{S_F}")
        a(f"v_lshl_or_b32 v{TM}, v{TM+1}, 16, v{TM}")
        a(f"v_cmp_ne_u32 vcc, s{S_TAG}, v{TM}"); a("s_cmp_lg_u64 vcc, 0")
        g.spin_end(nm)
        for h in range(2): a(f"v_pk_add_f32 v[{SA+4*s+2*h}:{SA+4*s+2*h+1}], v[{SA+4*s+2*h}:{SA+4*s+2*h+1}], v[{X+2*h}:{X+2*h+1}]")
        a(f"{nm}_skip:")
    g.stamp(8)
    softmax_pair(0, 3)
    summ(0); summ(3); pv([6, 8, 7, 9])
    RC = MX
    sm = lambda s: SUM + 4*s
    a(f"v_cndmask_b32 v{RC}, v{sm(1)}, v{sm(0)}, s[{S_M}:{S_M+1}]")
    a(f"v_cndmask_b32 v{RC+2}, v{sm(1)}, v{sm(0)}, s[{S_M+2}:{S_M+3}]"); a(f"v_cndmask_b32 v{RC+2}, v{RC+2}, v{sm(2)}, s[{S_M+4}:{S_M+5}]")
    a(f"v_cndmask_b32 v{RC+4}, v{sm(2)}, v{sm(1)}, s[{S_M+6}:{S_M+7}]"); a(f"v_cndmask_b32 v{RC+4}, v{RC+4}, v{sm(3)}, s[{S_M+8}:{S_M+9}]")
    a(f"v_cndmask_b32 v{RC+6}, v{sm(2)}, v{sm(3)}, s[{S_M+10}:{S_M+11}]")
    for T in range(4): a(f"v_rcp_f32 v{RC+2*T}, v{RC+2*T}")
    a(f"s_mul_i32 s{S_A}, s{S_T}, 20"); a(f"s_lshl_b32 s{S_A}, s{S_A}, 10"); a(f"s_add_u32 s{S_E}, s{S_A}, s{S_TB}")
    a(f"s_lshl_b32 s{S_A}, s{S_C}, 11"); a(f"s_add_u32 s{S_D}, s{S_A}, s{S_E}")
    OP = XR
    for T in range(4):
        for h in range(2): a(f"v_pk_mul_f32 v[{OT+4*T+2*h}:{OT+4*T+2*h+1}], v[{OT+4*T+2*h}:{OT+4*T+2*h+1}], v[{RC+2*T}:{RC+2*T+1}] op_sel_hi:[1,0]")
        for h in range(2): a(f"v_cvt_pk_bf16_f32 v{OP+2*T+h}, v{OT+4*T+2*h}, v{OT+4*T+2*h+1}")
        if T % 2: a(f"buffer_store_dwordx4 v[{OP+2*T-2}:{OP+2*T+1}], v{VL16}, s[{SWS}:{SWS+3}], s{S_D} offen offset:{(T//2)*1024} sc1")
    g.stamp(9)
    XL = 128; AC2 = 192; WF = 136
    for T in range(4): a(f"buffer_load_dwordx2 v[{XL+2*T}:{XL+2*T+1}], v{VXO}, s[{SX}:{SX+3}], 0 offen offset:{32*T}")
    a(f"s_mul_i32 s{S_A}, s{S_T}, 1280"); a(f"s_add_u32 s{S_A}, s{S_A}, s{S_TB}"); a(f"s_add_u32 s{S_F}, s{S_A}, {T_FLAG}")
    a(f"s_lshl_b32 s{S_A}, s{S_C}, 7"); a(f"s_add_u32 s{S_A}, s{S_A}, s{S_F}")
    a(f"v_mov_b32 v{TM}, s{S_TAG}"); a(f"v_mov_b32 v{TM+1}, 0")
    a(f"v_min_u32 v{TM+2}, 9, v0"); a(f"v_lshlrev_b32 v{TM+2}, 7, v{TM+2}")
    a(f"v_add_f32 v{RQ}, 1.0, v{NM+1}"); a(f"v_mul_f32 v{MX}, v{NM}, v{NM+1}")
    a("s_waitcnt vmcnt(0)")
    a("s_mov_b64 exec, 1")
    a(f"buffer_store_dword v{TM}, v{TM+1}, s[{SWS}:{SWS+3}], s{S_A} offen sc1")
    a("s_mov_b64 exec, -1")
    g.stamp(10)
    for T in range(4):
        for h in range(2):
            d = AC2 + 4*T + 2*h
            a(f"v_lshlrev_b32 v{d}, 16, v{XL+2*T+h}"); a(f"v_and_b32 v{d+1}, 0xffff0000, v{XL+2*T+h}")
            a(f"v_pk_fma_f32 v[{d}:{d+1}], v[{d}:{d+1}], v[{RQ}:{RQ+1}], v[{MX}:{MX+1}] op_sel_hi:[1,0,0]")
    a("s_barrier")
    a(f"v_mov_b32 v{TM+3}, {M_SEL}"); a(f"ds_read_b64 v[{NM}:{NM+1}], v{TM+3}")
    g.spin_begin("L_fpoll")
    a(f"buffer_load_dword v{TM+4}, v{TM+2}, s[{SWS}:{SWS+3}], s{S_F} offen sc1")
    a("s_waitcnt vmcnt(0)")
    a(f"v_cmp_ne_u32 vcc, s{S_TAG}, v{TM+4}"); a("s_cmp_lg_u64 vcc, 0")
    g.spin_end("L_fpoll")
    OF = 48
    for ks in range(20):
        if ks % 4 == 0 and ks: a(f"s_add_u32 s{S_E}, s{S_E}, 4096")
        a(f"buffer_load_dwordx4 v[{OF+4*ks}:{OF+4*ks+3}], v{VL16}, s[{SWS}:{SWS+3}], s{S_E} offen offset:{(ks%4)*1024} sc1")
    g.stamp(11)
    a("s_waitcnt lgkmcnt(0)")
    a(f"v_readfirstlane_b32 s{S_D}, v{NM}"); a(f"v_readfirstlane_b32 s{S_E}, v{NM+1}")
    issued.clear(); state["done"] = 0
    units = [(ks, T) for ks in range(20) for T in range(4)]
    NR = 7
    def rd_wo(u):
        ks, T = units[u]; f = WF + 4*(u % 14)
        if ks == 10 : a(f"v_add_u32 v{VWA+T}, {10*4096}, v{VWA+T}")
        o = (ks % 10) * 4096
        rd((u, 0), f"ds_read_b64_tr_b16 v[{f}:{f+1}], v{VWA+T} offset:{o}")
        rd((u, 1), f"ds_read_b64_tr_b16 v[{f+2}:{f+3}], v{VWA+T} offset:{o+2048}")
    for u in range(NR): rd_wo(u)
    for u, (ks, T) in enumerate(units):
        if T == 0: a(f"s_waitcnt vmcnt({19-ks})")
        ens([(u, 1)])
        f = WF + 4*(u % 14)
        a(f"v_mfma_f32_16x16x32_bf16 v[{AC2+4*T}:{AC2+4*T+3}], v[{f}:{f+3}], v[{OF+4*ks}:{OF+4*ks+3}], v[{AC2+4*T}:{AC2+4*T+3}]")
        if u + NR < 80: rd_wo(u + NR)
    g.stamp(12)
    a(f"s_and_b32 s{S_A}, s{S_D}, s{S_E}"); a(f"s_cmp_eq_u32 s{S_A}, -1"); a("s_cbranch_scc0 L_addy")
    a("L_final:")
    a("s_nop 7")
    for T in range(4):
        for h in range(2): a(f"v_cvt_pk_bf16_f32 v{OP+2*T+h}, v{AC2+4*T+2*h}, v{AC2+4*T+2*h+1}")
    for P in range(2):
        for h in range(2): a(f"v_permlane16_swap_b32 v{OP+4*P+h}, v{OP+4*P+2+h}")
        a(f"buffer_store_dwordx4 v[{OP+4*P}:{OP+4*P+3}], v{VOO}, s[{SOUT}:{SOUT+3}], 0 offen offset:{64*P}")
    a("s_branch L_fin")
    a("L_addy:")
    a("s_barrier")
    a(f"s_lshl_b32 s{S_A}, s{S_T}, 4"); a(f"v_add_u32 v{TM}, s{S_A}, v{VI}")
    a(f"v_lshlrev_b32 v{TM+1}, 4, v{VG}"); a(f"v_add_u32 v{TM+1}, {M_Y}, v{TM+1}")
    for e, sr in ((0, S_D), (1, S_E)):
        for T in range(4): a(f"ds_read_b128 v[{48+4*T}:{51+4*T}], v{TM+1} offset:{256*e + 64*T}")
        a(f"v_cmp_eq_u32 vcc, s{sr}, v{TM}")
        a("s_waitcnt lgkmcnt(0)")
        for r in range(16):
            a(f"v_cndmask_b32 v{48+r}, 0, v{48+r}, vcc"); a(f"v_add_f32 v{AC2+r}, v{AC2+r}, v{48+r}")
    a("s_branch L_final")
    a("L_collect:")
    a(f"v_mov_b32 v48, s{S_TAG}"); a("v_mov_b32 v49, 0"); a(f"s_lshl_b32 s{S_A}, s2, 2"); a(f"s_add_u32 s{S_A}, s{S_A}, {W_ACK}")
    a("s_mov_b64 exec, 1")
    a(f"buffer_store_dword v48, v49, s[{SWS}:{SWS+3}], s{S_A} offen sc1")
    a("s_mov_b64 exec, -1")
    a(f"s_and_b32 s{S_A}, s2, 31"); a(f"s_lshl_b32 s{S_A}, s{S_A}, 7"); a(f"s_add_u32 s{S_A}, s{S_A}, {W_HDR}")
    g.spin_begin("L_hpoll")
    a(f"buffer_load_dwordx4 v[52:55], v49, s[{SWS}:{SWS+3}], s{S_A} offen sc1")
    a("s_waitcnt vmcnt(0)")
    a(f"v_cmp_ne_u32 vcc, s{S_TAG}, v54"); a("s_cmp_lg_u64 vcc, 0")
    g.spin_end("L_hpoll", 2)
    a(f"s_cmp_eq_u32 s{S_J}, 0"); a(f"s_cselect_b32 s{S_B}, 0, 7"); a(f"s_mul_i32 s{S_Cc}, s{S_J}, 104")
    for e, sr in ((0, S_D), (1, S_E)):
        a(f"v_readfirstlane_b32 s{sr}, v{52+e}")
        a(f"s_and_b32 s{sr}, s{sr}, 0x7ff"); a(f"s_and_b32 s{S_A}, s{sr}, 1"); a(f"s_lshr_b32 s{sr}, s{sr}, 1"); a(f"s_sub_u32 s{sr}, s{sr}, s{S_Cc}")
        a(f"s_cmp_eq_u32 s{S_A}, s{S_P}"); a(f"s_cselect_b32 s{sr}, s{sr}, -1")
        a(f"s_cmp_lt_u32 s{sr}, 111"); a(f"s_cselect_b32 s{sr}, s{sr}, -1")
        a(f"s_cmp_ge_u32 s{sr}, s{S_B}"); a(f"s_cselect_b32 s{sr}, s{sr}, -1")
    a(f"v_mov_b32 v56, s{S_D}"); a(f"v_mov_b32 v57, s{S_E}"); a(f"v_mov_b32 v58, {M_SEL}")
    a("ds_write_b64 v58, v[56:57]")
    a("s_waitcnt vmcnt(0) lgkmcnt(0)")
    a("s_barrier")
    a(f"s_and_b32 s{S_A}, s{S_D}, s{S_E}"); a(f"s_cmp_eq_u32 s{S_A}, -1"); a("s_cbranch_scc1 L_fin")
    a(f"v_mul_u32_u24 v58, 5120, v{VG}"); a(f"v_lshl_add_u32 v58, v{VI}, 4, v58")
    a(f"v_cmp_eq_u32 vcc, 3, v{VG}"); a("v_mov_b32 v59, 0x7f000000"); a("v_cndmask_b32 v59, v58, v59, vcc")
    a(f"v_cmp_ne_u32 s[{S_TMP2}:{S_TMP2+1}], 3, v{VG}")
    a(f"s_mov_b32 s{S_F}, 0x0c0c0400")
    for e in range(2):
        a(f"s_lshl_b32 s{S_B}, s{S_C}, 8"); a(f"s_add_u32 s{S_B}, s{S_B}, {W_YP + 2560*e}")
        g.spin_begin(f"L_ypoll{e}")
        for i in range(7):
            a(f"s_add_u32 s{S_A}, s{S_B}, {i*4*5120}")
            a(f"buffer_load_dwordx4 v[{64+4*i}:{67+4*i}], v{59 if i == 6 else 58}, s[{SWS}:{SWS+3}], s{S_A} offen sc1")
        a("s_waitcnt vmcnt(0)")
        a(f"s_mov_b64 s[{S_TMP2+2}:{S_TMP2+3}], 0")
        for i in range(7):
            X = 64 + 4*i
            a(f"v_perm_b32 v60, v{X+1}, v{X}, s{S_F}"); a(f"v_perm_b32 v61, v{X+3}, v{X+2}, s{S_F}"); a("v_lshl_or_b32 v60, v61, 16, v60")
            a(f"v_cmp_ne_u32 vcc, s{S_TAG}, v60")
            if i == 6: a(f"s_and_b64 vcc, vcc, s[{S_TMP2}:{S_TMP2+1}]")
            a(f"s_or_b64 s[{S_TMP2+2}:{S_TMP2+3}], s[{S_TMP2+2}:{S_TMP2+3}], vcc")
        g.spin_end(f"L_ypoll{e}", 4)
        for i in range(1, 7):
            for r in range(4): a(f"v_add_f32 v{64+r}, v{64+r}, v{64+4*i+r}")
        for r in range(4):
            for sw in ("v_permlane16_swap_b32", "v_permlane32_swap_b32"):
                a(f"v_mov_b32 v60, v{64+r}"); a(f"{sw} v60, v{64+r}"); a(f"v_add_f32 v{64+r}, v{64+r}, v60")
        a(f"v_and_b32 v60, 0xfffff800, v{52+e}"); a("v_not_b32 v61, v60"); a("v_ashrrev_i32 v61, 31, v61"); a("v_or_b32 v61, 0x80000000, v61"); a("v_xor_b32 v60, v60, v61")
        a(f"v_mul_f32 v60, {fl(-math.log2(math.e))}, v60"); a("v_exp_f32 v60, v60"); a("v_add_f32 v60, 1.0, v60"); a("v_rcp_f32 v60, v60")
        for r in range(4): a(f"v_mul_f32 v{64+r}, v{64+r}, v60")
        a(f"v_lshlrev_b32 v61, 4, v{VI}"); a(f"v_add_u32 v61, {M_Y + 256*e}, v61")
        a("ds_write_b128 v61, v[64:67]")
        a("s_waitcnt lgkmcnt(0)")
    a("s_barrier")
    a("s_branch L_fin")
    gen_aux(g)
    a("L_fin:")
    if stamps:
        g.stamp(15)
        a(f"s_lshl_b32 s{S_A}, s2, 3"); a(f"s_add_u32 s{S_A}, s{S_A}, s{S_WAVE}"); a(f"s_lshl_b32 s{S_A}, s{S_A}, 6"); a(f"s_add_u32 s{S_A}, s{S_A}, {200<<20}")
        a("v_mov_b32 v1, 0"); a("s_mov_b64 exec, 1")
        for i in range(16):
            a(f"v_mov_b32 v2, s{80+i}"); a(f"buffer_store_dword v2, v1, s[{SWS}:{SWS+3}], s{S_A} offen offset:{4*i}")
    a("L_end:")
    a("s_endpgm")
    a("L_code_end:")
    lines, added = hazard.fix(a.lines)
    body = "\n".join(lines) + "\n"
    return wrap([f"grid=(256,1,1) block=(512,1,1) lds={LDS_BYTES}"], body, [kd(kn, 256)])

def gen_aux(g):
    a = g.a
    SWR, SG, SD = 60, 64, 68
    S_Q, S_SL = 32, 33
    a("L_aux:")
    a(f"s_lshr_b32 s{S_Q}, s{S_XCD}, 1"); a(f"s_sub_u32 s{S_A}, s{S_IDX}, 25"); a(f"s_lshl_b32 s{S_SL}, s{S_A}, 1")
    a(f"s_and_b32 s{S_B}, s{S_XCD}, 1"); a(f"s_add_u32 s{S_SL}, s{S_SL}, s{S_B}")
    a(f"v_and_b32 v5, 15, v0"); a("v_lshrrev_b32 v6, 4, v0")
    a(f"s_cmp_ge_u32 s{S_SL}, 7"); a("s_cbranch_scc1 L_moe")
    a(f"s_load_dwordx2 s[{SWR}:{SWR+1}], s[0:1], 32"); a(f"s_mov_b32 s{SWR+2}, 1280"); a(f"s_mov_b32 s{SWR+3}, 0x20000")
    a(f"s_cmp_eq_u32 s{S_WAVE}, 7"); a("s_cbranch_scc0 L_nocp")
    a(f"s_getpc_b64 s[{S_TMP2}:{S_TMP2+1}]")
    a("L_pc:")
    a(f"s_sub_u32 s{S_TMP2}, s{S_TMP2}, L_pc-{NAME}_kernel"); a(f"s_subb_u32 s{S_TMP2+1}, s{S_TMP2+1}, 0")
    a("v_lshlrev_b32 v7, 7, v0")
    for k in range(3):
        a(f"v_min_u32 v8, L_code_end-{NAME}_kernel-4, v7"); a(f"global_load_dword v9, v8, s[{S_TMP2}:{S_TMP2+1}]"); a("v_add_u32 v7, 8192, v7")
    a("L_nocp:")
    S_P2, S_CI = 34, 35
    a(f"s_lshr_b32 s{S_P2}, s{S_Q}, 1")
    a(f"s_mul_i32 s{S_CI}, s{S_SL}, 76"); a(f"s_lshl_b32 s{S_A}, s{S_WAVE}, 2"); a(f"s_add_u32 s{S_CI}, s{S_CI}, s{S_A}")
    a(f"s_and_b32 s{S_B}, s{S_Q}, 1"); a(f"s_lshl_b32 s{S_B}, s{S_B}, 9")
    a("v_mov_b32 v15, 0x7f000000"); a("v_lshlrev_b32 v16, 4, v5")
    XR_ = 40; WR_ = 20
    a("s_waitcnt lgkmcnt(0)")
    a(f"s_load_dword s{S_TAG}, s[{SWS}:{SWS+1}], {W_EPOCH}")
    for n in range(3):
        a(f"s_add_u32 s{S_A}, s{S_CI}, {32*n}"); a(f"v_add_u32 v7, s{S_A}, v6")
        a(f"s_movk_i32 s{S_A}, 512")
        if n == 2:
            a(f"s_cmp_lt_u32 s{S_WAVE}, 3"); a(f"s_cselect_b32 s{S_A}, s{S_A}, 0")
        a(f"v_cmp_gt_u32 vcc, s{S_A}, v7")
        a(f"v_add_u32 v7, s{S_B}, v7"); a(f"v_lshl_add_u32 v7, v7, 1, s{S_P2}")
        a(f"v_cndmask_b32 v{10+n}, -1, v7, vcc")
        a("v_mul_u32_u24 v8, 1280, v7"); a("v_add_u32 v8, v8, v16"); a("v_cndmask_b32 v8, v15, v8, vcc")
        for u in range(5): a(f"buffer_load_dwordx4 v[{XR_+20*n+4*u}:{XR_+20*n+4*u+3}], v8, s[{SX}:{SX+3}], 0 offen offset:{256*u}")
        if n == 0:
            for u in range(5): a(f"buffer_load_dwordx4 v[{WR_+4*u}:{WR_+4*u+3}], v16, s[{SWR}:{SWR+3}], 0 offen offset:{256*u}")
    a(f"s_lshr_b32 s{S_A}, s{S_SL}, 1"); a(f"s_lshl_b32 s{S_A}, s{S_A}, 3"); a(f"s_add_u32 s{S_A}, s{S_A}, s{S_WAVE}"); a(f"s_lshl_b32 s{S_A}, s{S_A}, 6")
    a(f"v_add_u32 v7, s{S_A}, v0")
    a(f"s_and_b32 s{S_A}, s{S_XCD}, 1"); a(f"s_mul_i32 s{S_Cc}, s{S_A}, 640"); a(f"s_sub_u32 s{S_A}, 4, s{S_A}"); a(f"s_lshl_b32 s{S_A}, s{S_A}, 9")
    for n in range(3):
        a("v_mul_u32_u24 v8, 13108, v7"); a("v_lshrrev_b32 v8, 16, v8"); a("v_mul_u32_u24 v8, 640, v8"); a("v_lshl_add_u32 v8, v7, 7, v8")
        a(f"buffer_load_dword v{100+n}, v8, s[{SWO}:{SWO+3}], s{S_Cc} offen")
        a(f"v_add_u32 v7, s{S_A}, v7")
    a("s_waitcnt lgkmcnt(0)")
    a(f"s_add_u32 s{S_TAG}, s{S_TAG}, {TAGC}")
    a("s_barrier")
    g.stamp(2)
    a("v_mov_b32 v17, 0x3f803f80")
    def rowsum(v):
        for r in (8, 4, 2, 1): a(f"v_add_f32_dpp v{v}, v{v}, v{v} row_ror:{r} row_mask:0xf bank_mask:0xf")
    def rbf(v):
        a(f"v_cvt_pk_bf16_f32 v{v}, v{v}, v{v}"); a(f"v_lshlrev_b32 v{v}, 16, v{v}")
    a("s_waitcnt vmcnt(13)")
    a("v_mov_b32 v18, 0")
    for k in range(20): a(f"v_dot2_f32_bf16 v18, v{WR_+k}, v17, v18")
    rowsum(18)
    a("v_mov_b32 v110, 0"); a("v_mov_b32 v111, 0")
    a(f"s_lshl_b32 s{S_A}, s{S_P2}, 14"); a(f"s_add_u32 s{S_D}, s{S_A}, {W_STATS}")
    a(f"v_cmp_eq_u32 s[{S_TMP2}:{S_TMP2+1}], 0, v5")
    for n in range(3):
        a(f"s_waitcnt vmcnt({13 - 5*n + n if n else 13})")
        for k in range(3): a(f"v_mov_b32 v{104+k}, 0")
        for k in range(20):
            x = XR_ + 20*n + k
            a(f"v_dot2_f32_bf16 v104, v{x}, v17, v104"); a(f"v_dot2_f32_bf16 v105, v{x}, v{x}, v105"); a(f"v_dot2_f32_bf16 v106, v{x}, v{WR_+k}, v106")
        for k in range(3): rowsum(104 + k)
        a(f"v_mul_f32 v104, {fl(1/640)}, v104"); a(f"v_mul_f32 v105, {fl(1/640)}, v105")
        a("v_fma_f32 v105, -v104, v104, v105"); a("v_max_f32 v105, 0, v105")
        rbf(104); rbf(105); a(f"v_add_f32 v105, {fl(1e-5)}, v105"); rbf(105)
        a("v_sqrt_f32 v105, v105"); rbf(105); a("v_rcp_f32 v113, v105")
        a("v_sub_f32 v112, 0, v104")
        a("v_fma_f32 v106, v112, v18, v106"); a("v_mul_f32 v106, v106, v113")
        a("v_ashrrev_i32 v107, 31, v106"); a("v_or_b32 v107, 0x80000000, v107"); a("v_xor_b32 v106, v106, v107")
        a("v_and_b32 v106, 0xfffff800, v106"); a(f"v_or_b32 v114, v106, v{10+n}")
        a(f"v_cmp_ne_u32 vcc, -1, v{10+n}"); a("v_cndmask_b32 v114, 0, v114, vcc")
        a(f"v_mov_b32 v115, s{S_TAG}")
        a(f"s_and_b64 vcc, vcc, s[{S_TMP2}:{S_TMP2+1}]")
        a(f"v_lshrrev_b32 v107, 1, v{10+n}"); a("v_lshlrev_b32 v107, 4, v107"); a("v_cndmask_b32 v107, v15, v107, vcc")
        a(f"buffer_store_dwordx4 v[112:115], v107, s[{SWS}:{SWS+3}], s{S_D} offen sc1")
        a("v_min_u32 v108, v110, v114"); a("v_max_u32 v110, v110, v114"); a("v_max_u32 v111, v111, v108")
    def top2_merge(h, l, t, sw):
        a(f"v_mov_b32 v{t}, v{h}"); a(f"v_mov_b32 v{t+1}, v{l}")
        a(f"{sw} v{t}, v{h}"); a(f"{sw} v{t+1}, v{l}")
        a(f"v_min_u32 v{t+2}, v{t}, v{h}"); a(f"v_max_u32 v{h}, v{t}, v{h}"); a(f"v_max3_u32 v{l}, v{l}, v{t+1}, v{t+2}")
    top2_merge(110, 111, 104, "v_permlane16_swap_b32"); top2_merge(110, 111, 104, "v_permlane32_swap_b32")
    a("v_mov_b32 v116, v110"); a("v_mov_b32 v117, v111"); a(f"v_mov_b32 v118, s{S_TAG}"); a(f"v_mov_b32 v119, s{S_TAG}"); a("v_mov_b32 v7, 0")
    a(f"s_mul_i32 s{S_A}, s{S_Q}, 7"); a(f"s_add_u32 s{S_A}, s{S_A}, s{S_SL}"); a(f"s_lshl_b32 s{S_A}, s{S_A}, 3"); a(f"s_add_u32 s{S_A}, s{S_A}, s{S_WAVE}")
    a(f"s_lshl_b32 s{S_A}, s{S_A}, 4"); a(f"s_add_u32 s{S_A}, s{S_A}, {W_CAND}")
    a(f"s_lshl_b32 s{S_B}, s2, 2"); a(f"s_add_u32 s{S_B}, s{S_B}, {W_ACK}")
    a("s_mov_b64 exec, 1")
    a(f"buffer_store_dwordx4 v[116:119], v7, s[{SWS}:{SWS+3}], s{S_A} offen sc1")
    a(f"s_cmp_eq_u32 s{S_WAVE}, 0"); a("s_cbranch_scc0 L_noack1")
    a(f"buffer_store_dword v118, v7, s[{SWS}:{SWS+3}], s{S_B} offen sc1")
    a("L_noack1:")
    a("s_mov_b64 exec, -1")
    g.stamp(3)
    if g.stamps:
        a("s_waitcnt vmcnt(0)"); g.stamp(4)
    a("s_branch L_fin")
    a("L_moe:")
    S_U = 34
    a(f"s_mul_i32 s{S_U}, s{S_Q}, 7"); a(f"s_add_u32 s{S_U}, s{S_U}, s{S_SL}"); a(f"s_sub_u32 s{S_U}, s{S_U}, 7")
    a(f"s_cmp_eq_u32 s{S_U}, 27"); a("s_cbranch_scc1 L_sel")
    a(f"s_cmp_lt_u32 s{S_WAVE}, 4"); a("s_cbranch_scc0 L_up")
    a(f"s_load_dwordx2 s[{SG}:{SG+1}], s[0:1], 40"); a("s_branch L_gu")
    a("L_up:"); a(f"s_load_dwordx2 s[{SG}:{SG+1}], s[0:1], 48")
    a("L_gu:")
    a(f"s_load_dwordx2 s[{SD}:{SD+1}], s[0:1], 56")
    a(f"s_mov_b32 s{SG+2}, {640*3456}"); a(f"s_mov_b32 s{SG+3}, 0x20000"); a(f"s_mov_b32 s{SD+2}, {1728*1280}"); a(f"s_mov_b32 s{SD+3}, 0x20000")
    S_KQ = 35
    a(f"s_and_b32 s{S_KQ}, s{S_WAVE}, 3")
    a(f"v_mul_u32_u24 v7, {8*3456}, v6"); a("v_lshl_add_u32 v7, v5, 3, v7")
    a(f"s_mul_i32 s{S_A}, s{S_KQ}, {160*3456}"); a(f"s_lshl_b32 s{S_B}, s{S_U}, 7"); a(f"s_add_u32 s{S_B}, s{S_A}, s{S_B}")
    a("s_waitcnt lgkmcnt(0)")
    a(f"s_load_dword s{S_TAG}, s[{SWS}:{SWS+1}], {W_EPOCH}")
    RAW = 20; FR = 100; XN = 180
    for ks in range(5):
        for j in range(8):
            r = RAW + 16*ks + 2*j
            a(f"buffer_load_dwordx2 v[{r}:{r+1}], v7, s[{SG}:{SG+3}], s{S_B} offen")
            a(f"s_add_u32 s{S_B}, s{S_B}, {3456 if j < 7 else 25*3456}")
    a("s_waitcnt lgkmcnt(0)")
    a(f"s_add_u32 s{S_TAG}, s{S_TAG}, {TAGC}")
    for k in range(4): a(f"s_bfe_u32 s{S_TB0+k}, s{S_TAG}, {(8 << 16) | (8*k)}")
    g.stamp(2)
    a("v_mov_b32 v8, 0")
    a(f"s_and_b32 s{S_A}, s2, 31"); a(f"s_lshl_b32 s{S_A}, s{S_A}, 7"); a(f"s_add_u32 s{S_A}, s{S_A}, {W_HDR}")
    g.spin_begin("L_mh")
    a(f"buffer_load_dwordx4 v[12:15], v8, s[{SWS}:{SWS+3}], s{S_A} offen sc1")
    a("s_waitcnt vmcnt(0)")
    a(f"v_cmp_ne_u32 vcc, s{S_TAG}, v14"); a("s_cmp_lg_u64 vcc, 0")
    g.spin_end("L_mh", 2)
    g.stamp(3)
    a("v_cmp_eq_u32 vcc, 0, v5"); a("v_cndmask_b32 v9, v13, v12, vcc"); a("v_and_b32 v9, 0x7ff, v9")
    a(f"v_cmp_gt_u32 s[{S_TMP2+2}:{S_TMP2+3}], 2, v5"); a("v_mov_b32 v10, 0x7f000000")
    a("v_mul_u32_u24 v11, 1280, v9"); a("v_lshl_add_u32 v11, v6, 4, v11"); a(f"v_cndmask_b32 v11, v10, v11, s[{S_TMP2+2}:{S_TMP2+3}]")
    a(f"s_mul_i32 s{S_A}, s{S_KQ}, 320")
    for ks in range(5): a(f"buffer_load_dwordx4 v[{XN+4*ks}:{XN+4*ks+3}], v11, s[{SX}:{SX+3}], s{S_A} offen offset:{64*ks}")
    a("v_and_b32 v11, 1, v9"); a("v_lshlrev_b32 v11, 14, v11"); a("v_lshrrev_b32 v9, 1, v9"); a("v_lshl_add_u32 v11, v9, 4, v11")
    a(f"v_cndmask_b32 v11, v10, v11, s[{S_TMP2+2}:{S_TMP2+3}]"); a(f"s_movk_i32 s{S_B}, {W_STATS}")
    g.spin_begin("L_ms")
    a(f"buffer_load_dwordx4 v[16:19], v11, s[{SWS}:{SWS+3}], s{S_B} offen sc1")
    a("s_waitcnt vmcnt(0)")
    a(f"v_cmp_ne_u32 vcc, s{S_TAG}, v19"); a(f"s_and_b64 vcc, vcc, s[{S_TMP2+2}:{S_TMP2+3}]")
    g.spin_end("L_ms", 1)
    a("v_lshlrev_b32 v9, 4, v0")
    a(f"s_mul_i32 s{S_B}, s{S_U}, 81920"); a(f"s_lshl_b32 s{S_Cc}, s{S_WAVE}, 10"); a(f"s_add_u32 s{S_B}, s{S_B}, s{S_Cc}")
    for n in range(10):
        a(f"s_add_u32 m0, s{S_Cc}, {n*8192}"); a(f"s_add_u32 s{S_A}, s{S_B}, {n*8192}")
        a(f"buffer_load_dwordx4 v9, s[{SD}:{SD+3}], s{S_A} offen lds")
    for k in range(20):
        x = XN + k
        a(f"v_lshlrev_b32 v12, 16, v{x}"); a(f"v_and_b32 v13, 0xffff0000, v{x}")
        a("v_pk_add_f32 v[12:13], v[12:13], v[16:17] op_sel_hi:[1,0]"); a("v_pk_mul_f32 v[12:13], v[12:13], v[16:17] op_sel:[0,1] op_sel_hi:[1,1]")
        a(f"v_cvt_pk_bf16_f32 v{x}, v12, v13")
    a(f"s_mov_b32 s{S_A}, 0x05040100"); a(f"s_mov_b32 s{S_B}, 0x07060302")
    for ks in range(5):
        for jp in range(4):
            r = RAW + 16*ks + 4*jp
            for T in range(4):
                a(f"v_perm_b32 v{FR+16*ks+4*T+jp}, v{r+2+(T>>1)}, v{r+(T>>1)}, s{S_B if T & 1 else S_A}")
    GA = 200
    for ks in range(5):
        for T in range(4):
            c = f"v[{GA+4*T}:{GA+4*T+3}]" if ks else "0"
            a(f"v_mfma_f32_16x16x32_bf16 v[{GA+4*T}:{GA+4*T+3}], v[{XN+4*ks}:{XN+4*ks+3}], v[{FR+16*ks+4*T}:{FR+16*ks+4*T+3}], {c}")
    PART = 81920; HB = PART + 4096
    a(f"s_lshl_b32 s{S_A}, s{S_WAVE}, 9"); a(f"s_add_u32 s{S_A}, s{S_A}, {PART}"); a(f"v_lshl_add_u32 v9, v5, 4, s{S_A}")
    for e in range(2):
        for T in range(4): a(f"v_mov_b32 v{20+4*e+T}, v{GA+4*T+e}")
    a("s_mov_b64 exec, 0xffff")
    for e in range(2): a(f"ds_write_b128 v9, v[{20+4*e}:{23+4*e}] offset:{256*e}")
    a("s_mov_b64 exec, -1")
    a("s_waitcnt lgkmcnt(0)"); a("s_barrier")
    a(f"s_cmp_lt_u32 s{S_WAVE}, 2"); a("s_cbranch_scc0 L_noh")
    a(f"s_lshl_b32 s{S_A}, s{S_WAVE}, 8"); a(f"s_add_u32 s{S_A}, s{S_A}, {PART}"); a(f"v_lshl_add_u32 v9, v0, 2, s{S_A}")
    for w in range(8): a(f"ds_read_b32 v{20+w}, v9 offset:{512*w}")
    a(f"v_mov_b32 v12, s{S_TAG}"); a(f"s_lshl_b32 s{S_B}, s2, 2"); a(f"s_add_u32 s{S_B}, s{S_B}, {W_ACK}")
    a("s_mov_b64 exec, 1"); a(f"buffer_store_dword v12, v8, s[{SWS}:{SWS+3}], s{S_B} offen sc1"); a("s_mov_b64 exec, -1")
    a("s_waitcnt lgkmcnt(0)")
    for b in (20, 24):
        a(f"v_add_f32 v{b}, v{b}, v{b+1}"); a(f"v_add_f32 v{b+2}, v{b+2}, v{b+3}"); a(f"v_add_f32 v{b}, v{b}, v{b+2}")
    a(f"v_mul_f32 v21, {fl(-math.log2(math.e))}, v20"); a("v_exp_f32 v21, v21"); a("v_add_f32 v21, 1.0, v21"); a("v_rcp_f32 v21, v21")
    a("v_mul_f32 v20, v20, v21"); a("v_mul_f32 v20, v20, v24"); a("v_cvt_pk_bf16_f32 v20, v20, v20")
    a(f"s_lshl_b32 s{S_A}, s{S_WAVE}, 7"); a(f"s_add_u32 s{S_A}, s{S_A}, {HB}"); a(f"v_lshl_add_u32 v9, v0, 1, s{S_A}")
    a("ds_write_b16 v9, v20")
    a("L_noh:")
    a("s_waitcnt vmcnt(0) lgkmcnt(0)"); a("s_barrier")
    g.stamp(4)
    a("v_and_b32 v9, 1, v5"); a("v_lshlrev_b32 v9, 7, v9"); a("v_lshl_add_u32 v9, v6, 4, v9"); a(f"v_add_u32 v9, {HB}, v9")
    for ks in range(2): a(f"ds_read_b128 v[{20+4*ks}:{23+4*ks}], v9 offset:{64*ks}")
    a("v_bfe_u32 v10, v0, 2, 2"); a("v_lshl_add_u32 v10, v6, 3, v10"); a("v_mul_u32_u24 v10, 1280, v10"); a("v_and_b32 v11, 3, v0"); a("v_lshl_add_u32 v10, v11, 3, v10")
    a(f"s_mul_i32 s{S_A}, s{S_WAVE}, 160"); a(f"v_add_u32 v10, s{S_A}, v10")
    for T in range(5):
        for ks in range(2):
            for j in range(2):
                r = 32 + 8*T + 4*ks + 2*j
                a(f"ds_read_b64_tr_b16 v[{r}:{r+1}], v10 offset:{ks*40960 + j*5120 + 32*T}")
        if T == 2: a("s_waitcnt lgkmcnt(0)")
    a("s_waitcnt lgkmcnt(0)")
    for ks in range(2):
        for T in range(5):
            c = f"v[{80+4*T}:{83+4*T}]" if ks else "0"
            a(f"v_mfma_f32_16x16x32_bf16 v[{80+4*T}:{83+4*T}], v[{32+8*T+4*ks}:{35+8*T+4*ks}], v[{20+4*ks}:{23+4*ks}], {c}")
    a("v_mul_u32_u24 v9, 2560, v5"); a("v_lshl_add_u32 v9, v6, 4, v9"); a("v_mov_b32 v10, 0x7f000000"); a(f"v_cndmask_b32 v9, v10, v9, s[{S_TMP2+2}:{S_TMP2+3}]")
    a(f"s_mul_i32 s{S_A}, s{S_U}, 5120"); a(f"s_mul_i32 s{S_B}, s{S_WAVE}, 320"); a(f"s_add_u32 s{S_A}, s{S_A}, s{S_B}"); a(f"s_add_u32 s{S_A}, s{S_A}, {W_YP}")
    a("v_mov_b32 v11, 0xffffff00")
    for T in range(5):
        for r in range(4): a(f"v_and_or_b32 v{80+4*T+r}, v{80+4*T+r}, v11, s{S_TB0+r}")
        a(f"buffer_store_dwordx4 v[{80+4*T}:{83+4*T}], v9, s[{SWS}:{SWS+3}], s{S_A} offen offset:{64*T} sc1")
    a("s_branch L_fin")
    a("L_sel:")
    a(f"s_cmp_eq_u32 s{S_WAVE}, 0"); a("s_cbranch_scc0 L_fin")
    a("s_waitcnt lgkmcnt(0)")
    a(f"s_load_dword s{S_TAG}, s[{SWS}:{SWS+1}], {W_EPOCH}")
    a("v_lshlrev_b32 v7, 4, v0"); a("v_min_u32 v8, 31, v0"); a("v_lshlrev_b32 v8, 4, v8")
    a(f"v_cmp_gt_u32 s[{S_TMP2}:{S_TMP2+1}], 32, v0")
    a(f"s_mov_b32 s{S_B}, {W_CAND}")
    a("s_waitcnt lgkmcnt(0)")
    a(f"s_add_u32 s{S_TAG}, s{S_TAG}, {TAGC}")
    g.spin_begin("L_sc")
    for i in range(4): a(f"buffer_load_dwordx4 v[{20+4*i}:{23+4*i}], v{8 if i == 3 else 7}, s[{SWS}:{SWS+3}], s{S_B} offen offset:{1024*i} sc1")
    a("s_waitcnt vmcnt(0)")
    a(f"s_mov_b64 s[{S_TMP2+2}:{S_TMP2+3}], 0")
    for i in range(4):
        a(f"v_cmp_ne_u32 vcc, s{S_TAG}, v{22+4*i}"); a(f"s_or_b64 s[{S_TMP2+2}:{S_TMP2+3}], s[{S_TMP2+2}:{S_TMP2+3}], vcc")
    g.spin_end("L_sc", 4)
    g.stamp(2)
    a(f"v_cndmask_b32 v32, 0, v32, s[{S_TMP2}:{S_TMP2+1}]"); a(f"v_cndmask_b32 v33, 0, v33, s[{S_TMP2}:{S_TMP2+1}]")
    for i in range(1, 4):
        a(f"v_min_u32 v40, v20, v{20+4*i}"); a(f"v_max_u32 v20, v20, v{20+4*i}"); a(f"v_max3_u32 v21, v21, v{21+4*i}, v40")
    for r in (8, 4, 2, 1):
        a(f"v_mov_b32_dpp v40, v20 row_ror:{r} row_mask:0xf bank_mask:0xf"); a(f"v_mov_b32_dpp v41, v21 row_ror:{r} row_mask:0xf bank_mask:0xf")
        a("v_min_u32 v42, v20, v40"); a("v_max_u32 v20, v20, v40"); a("v_max3_u32 v21, v21, v41, v42")
    top2_merge(20, 21, 40, "v_permlane16_swap_b32"); top2_merge(20, 21, 40, "v_permlane32_swap_b32")
    a(f"v_mov_b32 v22, s{S_TAG}"); a(f"v_mov_b32 v23, s{S_TAG}"); a("v_lshlrev_b32 v9, 7, v0"); a(f"s_mov_b32 s{S_B}, {W_HDR}")
    a("s_mov_b32 exec_hi, 0")
    a(f"buffer_store_dwordx4 v[20:23], v9, s[{SWS}:{SWS+3}], s{S_B} offen sc1")
    a("s_mov_b64 exec, -1")
    g.stamp(3)
    a(f"s_movk_i32 s{S_B}, {W_ACK}"); a(f"v_cmp_ne_u32 s[{S_TMP2}:{S_TMP2+1}], 63, v0")
    g.spin_begin("L_sa")
    a(f"buffer_load_dwordx4 v[24:27], v7, s[{SWS}:{SWS+3}], s{S_B} offen sc1")
    a("s_waitcnt vmcnt(0)")
    a(f"v_cmp_ne_u32 vcc, s{S_TAG}, v27"); a(f"s_and_b64 s[{S_TMP2+2}:{S_TMP2+3}], vcc, s[{S_TMP2}:{S_TMP2+1}]")
    for i in range(3):
        a(f"v_cmp_ne_u32 vcc, s{S_TAG}, v{24+i}"); a(f"s_or_b64 s[{S_TMP2+2}:{S_TMP2+3}], s[{S_TMP2+2}:{S_TMP2+3}], vcc")
    g.spin_end("L_sa", 8)
    a("v_mov_b32 v9, 0"); a("s_mov_b64 exec, 1")
    a(f"buffer_store_dword v22, v9, s[{SWS}:{SWS+3}], 0 offen offset:{W_EPOCH} sc1")
    a("s_mov_b64 exec, -1")

if __name__ == "__main__":
    open("k_main.s", "w").write(gen())
    open("k_stamp.s", "w").write(gen(stamps=True))
```
